```python
import torch

def _softmax(x, axis=-1):
    return torch.softmax(x, dim=axis)

def _gelu(x):
    return torch.nn.functional.gelu(x, approximate='tanh')

def _silu(x):
    return torch.nn.functional.silu(x)

def _sigmoid(x):
    return torch.sigmoid(x)

def _layernorm(x, axis=-1, eps=1e-05):
    m = x.mean(dim=axis, keepdim=True)
    v = x.var(dim=axis, keepdim=True, unbiased=False)
    return (x - m) / torch.sqrt(v + eps)

def _scatter_add(tgt, idx, src, axis=0):
    return tgt.clone().index_add_(axis, idx, src)

def _segment_sum(src, seg, n):
    out = torch.zeros((n,) + src.shape[1:], dtype=src.dtype)
    return out.index_add_(0, seg, src)

def _pad(x, pw):
    flat = tuple((v for pair in reversed(pw) for v in pair))
    return torch.nn.functional.pad(x, flat)
kernel_name = 'adaLN_cond__ssm_conv_h3__glu_gated_bilinear__prompt'

def setup_inputs():

    _w = lambda a: (lambda t: t.to(torch.bfloat16) if t.is_floating_point() else t)(torch.as_tensor(a))

    def _A_setup():
        B, S, D = (1, 2048, 640)
        ks = 4
        return {'q': _w((lambda *s: torch.randn(*s, dtype=torch.bfloat16) * 0.05)(B, S, D)), 'k': _w((lambda *s: torch.randn(*s, dtype=torch.bfloat16) * 1.6)(B, S, D)), 'v': _w((lambda *s: torch.randn(*s, dtype=torch.bfloat16) * 1.6)(B, S, D)), 'shift_k': _w((lambda *s: torch.randn(*s, dtype=torch.bfloat16) * 1.6)(D, ks) * 0.5), 'ssm_k': _w((lambda *s: torch.randn(*s, dtype=torch.bfloat16) * 1.6)(D, S) * (1.0 / S ** 0.5)), 'ssm_D': _w((lambda *s: torch.randn(*s, dtype=torch.bfloat16) * 1.6)(D))}
    _A_in = _A_setup()

    def _B_setup():
        B, S, D, F = (1, 2048, 640, 1728)
        return {'x': _w((lambda *s: torch.randn(*s, dtype=torch.bfloat16) * 0.05)(B, S, D)), 'w_gate': _w((lambda *s: torch.randn(*s, dtype=torch.bfloat16) * 3.2)(D, F) * D ** (-0.5)), 'w_up': _w((lambda *s: torch.randn(*s, dtype=torch.bfloat16) * 3.2)(D, F) * D ** (-0.5)), 'w_down': _w((lambda *s: torch.randn(*s, dtype=torch.bfloat16) * 3.2)(F, D) * F ** (-0.5))}
    _B_in = _B_setup()
    return {'A_q': _A_in['q'], 'A_k': _A_in['k'], 'A_v': _A_in['v'], 'A_shift_k': _A_in['shift_k'], 'A_ssm_k': _A_in['ssm_k'], 'A_ssm_D': _A_in['ssm_D'], 'B_x': _B_in['x'], 'B_w_gate': _B_in['w_gate'], 'B_w_up': _B_in['w_up'], 'B_w_down': _B_in['w_down'], 'c': _w((lambda *s: torch.randn(*s, dtype=torch.bfloat16) * 0.1)(1, 640) * 8.0), 'w_mod': _w((lambda *s: torch.randn(*s, dtype=torch.bfloat16) * 0.1)(640, 6 * 640) * 640 ** (-0.5) * 8.0)}

def reference(A_q, A_k, A_v, A_shift_k, A_ssm_k, A_ssm_D, B_x, B_w_gate, B_w_up, B_w_down, c, w_mod):

    def _A_ref(q, k, v, shift_k, ssm_k, ssm_D):
        B, S, D = q.shape
        ks = shift_k.shape[-1]
        k_pad = _pad(k, ((0, 0), (ks - 1, 0), (0, 0)))
        k_shift = torch.zeros_like(k)
        for t in range(ks):
            k_shift = k_shift + k_pad[:, t:t + S, :] * shift_k[:, ks - 1 - t][None, None, :]
        kv = k_shift * v
        L = 2 * S
        kv_pad = _pad(kv, ((0, 0), (0, S), (0, 0)))
        kf_pad = _pad(ssm_k, ((0, 0), (0, S)))
        kv_f = (lambda x, axes=(-2, -1): torch.fft.rfft2(x.float(), dim=axes))(kv_pad[:, None, :, :], axes=(1, 2))
        kf_f = (lambda x, axes=(-2, -1): torch.fft.rfft2(x.float(), dim=axes))(kf_pad[:, None, :], axes=(1, 2))
        kf_f = (lambda x, *d: x.permute(*d))(kf_f, 1, 2, 0)
        y_f = kv_f * kf_f[None, :, :, :]
        y = (lambda x, s, axes=(-2, -1): torch.fft.irfft2(x, s=s, dim=axes).to(torch.bfloat16))(y_f, (1, L), axes=(1, 2))[:, 0, :S, :]
        y = y + kv * ssm_D[None, None, :]
        return q * y

    def _B_ref(x, w_gate, w_up, w_down):
        g = torch.einsum('bsd,df->bsf', x, w_gate)
        u = torch.einsum('bsd,df->bsf', x, w_up)
        h = g * u
        return torch.einsum('bsf,fd->bsd', h, w_down)
    x = A_q
    mod = (_silu(c) @ w_mod).reshape(c.shape[0], 6, 1, -1)
    sa, ca, ga, sb, cb, gb = (mod[:, 0].clone(), mod[:, 1].clone(), mod[:, 2].clone(), mod[:, 3].clone(), mod[:, 4].clone(), mod[:, 5].clone())
    h = _layernorm(x, axis=-1) * (1 + ca) + sa
    x = x + ga * _A_ref(h, A_k, A_v, A_shift_k, A_ssm_k, A_ssm_D)
    h = _layernorm(x, axis=-1) * (1 + cb) + sb
    x = x + gb * _B_ref(h, B_w_gate, B_w_up, B_w_down)
    return x
```

```python
import re

TRANS = ("v_exp_f32", "v_log_f32", "v_rcp_f32", "v_rsq_f32", "v_sqrt_f32", "v_sin_f32", "v_cos_f32")

def regs_of(tok):
    tok = tok.strip()
    neg = tok.lstrip("-")
    if neg.startswith("abs(") or neg.startswith("neg("):
        neg = neg[4:-1]
    neg = neg.strip("|")
    m = re.fullmatch(r"([vas])\[(\d+):(\d+)\]", neg)
    if m:
        return {(m.group(1), i) for i in range(int(m.group(2)), int(m.group(3)) + 1)}
    m = re.fullmatch(r"([vas])(\d+)", neg)
    if m:
        return {(m.group(1), int(m.group(2)))}
    if neg == "vcc":
        return {("s", "vcc_lo"), ("s", "vcc_hi")}
    if neg in ("vcc_lo", "vcc_hi", "m0", "exec_lo", "exec_hi"):
        return {("s", neg)}
    if neg == "exec":
        return {("s", "exec_lo"), ("s", "exec_hi")}
    return set()

def split_ops(rest):
    out, depth, cur = [], 0, ""
    for ch in rest:
        if ch in "[(":
            depth += 1
        if ch in "])":
            depth -= 1
        if ch == "," and depth == 0:
            out.append(cur.strip()); cur = ""
        else:
            cur += ch
    if cur.strip():
        out.append(cur.strip())
    return out

class Ins:
    def __init__(self, text):
        self.text = text
        t = text.split(";")[0].strip()
        p = t.split(None, 1)
        self.op = p[0]
        rest = p[1] if len(p) > 1 else ""
        ops = split_ops(rest)
        mods = ""
        if ops:
            last = ops[-1].split(None, 1)
            if len(last) > 1 and not ops[-1].startswith("hwreg"):
                ops[-1], mods = last[0], last[1]
        self.ops, self.mods = ops, mods
        op = self.op
        R = [regs_of(o) for o in ops]
        self.w, self.r = set(), set()
        self.cls = "salu"
        self.states = 1
        self.srcc = set(); self.srcab = set(); self.passes = 0
        self.store_data = set()
        self.dpp = ("row_" in mods or "quad_perm" in mods or "wave_" in mods or "row_bcast" in mods)
        if op == "s_nop":
            self.states = int(ops[0], 0) + 1; self.cls = "nop"
        elif op.startswith("v_mfma"):
            self.cls = "mfma"
            self.w = R[0]; self.srcab = R[1] | R[2]; self.srcc = R[3]; self.r = self.srcab | self.srcc
            self.passes = 8 if "32x32" in op else 4
        elif op.startswith("v_"):
            self.cls = "valu"
            if op.startswith("v_permlane") and "swap" in op:
                self.w = R[0] | R[1]; self.r = R[0] | R[1]
            elif op.startswith("v_cmp"):
                self.w = R[0]; self.r = set().union(*R[1:])
            elif "_co_" in op:
                self.w = R[0] | R[1]; self.r = set().union(*R[2:])
            else:
                self.w = R[0]; self.r = set().union(*R[1:]) if len(R) > 1 else set()
                if op.startswith("v_fmac") or op.startswith("v_pk_fmac") or op.startswith("v_dot2c") or self.dpp or "dst_unused:UNUSED_PRESERVE" in mods or op.startswith("v_writelane") or ("op_sel" in mods and "cvt" in op):
                    self.r |= R[0]
                if op.startswith("v_cndmask") and len(ops) == 3:
                    self.r |= regs_of("vcc")
        elif op.startswith("ds_"):
            self.cls = "ds"
            if op.startswith("ds_read") or "permute" in op or "swizzle" in op:
                self.w = R[0]; self.r = set().union(*R[1:])
            else:
                self.r = set().union(*R)
        elif op.startswith("buffer_") or op.startswith("global_"):
            self.cls = "vmem"
            lds = (" lds" in (" " + mods)) or "_lds_" in op
            self.lds = lds
            if lds:
                self.r = set().union(*R) | regs_of("m0")
            elif "load" in op:
                self.w = R[0]; self.r = set().union(*R[1:])
            elif op in ("buffer_wbl2", "buffer_inv"):
                pass
            else:
                self.r = set().union(*R)
                if "store" in op and ("x3" in op or "x4" in op):
                    self.store_data = R[0] if op.startswith("buffer_") else R[1]
                if "atomic" in op and "sc0" in mods:
                    self.w = R[0]
        elif op.startswith("s_"):
            if op.startswith("s_load") or op.startswith("s_mem"):
                self.cls = "smem"; self.w = R[0]
            elif op.startswith(("s_cmp", "s_cbranch", "s_branch", "s_waitcnt", "s_barrier", "s_endpgm", "s_sleep", "s_setprio", "s_bitcmp")):
                self.r = set().union(*R) if R else set()
            else:
                self.w = R[0] if R else set(); self.r = set().union(*R[1:]) if len(R) > 1 else set()
                if "saveexec" in op:
                    self.w |= regs_of("exec")

def vecregs(s):
    return {x for x in s if x[0] in "va"}
def sregs(s):
    return {x for x in s if x[0] == "s"}

def need_states(p, c):
    n = 0
    if p.cls == "valu":
        pv, ps = vecregs(p.w), sregs(p.w)
        if c.cls == "mfma" and pv & c.r: n = max(n, 2)
        if c.cls == "vmem" and ps & c.r: n = max(n, 5)
        if c.cls == "valu" and ps & c.r: n = max(n, 4 if c.op.startswith(("v_readlane", "v_writelane")) else 2)
        if c.cls == "valu" and pv & c.r:
            if c.op.startswith(("v_readlane", "v_readfirstlane")): n = max(n, 1)
            if c.dpp or c.op.startswith("v_permlane"): n = max(n, 2)
            if p.op.replace("_e32", "").replace("_e64", "") in TRANS: n = max(n, 1)
            if "op_sel" in p.mods or "sdwa" in p.op or "dst_sel" in p.mods: n = max(n, 1)
        if c.cls == "salu" and ps & c.r: n = max(n, 1)
    if p.cls == "mfma":
        big = p.passes == 8
        if c.cls == "mfma":
            if p.w & c.srcab: n = max(n, 12 if big else 8)
            if p.w & c.srcc and (p.w != c.srcc or p.passes != c.passes): n = max(n, 10 if big else 6)
        elif c.cls in ("valu", "vmem", "ds"):
            if p.w & (c.r | c.w): n = max(n, 12 if big else 8)
            if c.cls == "valu" and p.srcc & c.w: n = max(n, 7 if big else 3)
    if p.cls == "salu" and ("s", "m0") in p.w:
        if c.cls == "vmem" and getattr(c, "lds", False): n = max(n, 1)
    if p.store_data and p.store_data & c.w:
        n = max(n, 2 if c.cls in ("valu", "mfma") else 1)
    return n

class K:
    def __init__(self, name="k", auto=True):
        self.name = name
        self.lines = []
        self.hist = []
        self.nlabel = 0
        self.auto = auto
        self.vm = []
        self.lg = []
        self.nops = 0
    def raw(self, l):
        self.lines.append(l)
    def __call__(self, s):
        for l in s.split("\n"):
            l = l.strip()
            if not l:
                continue
            if l.startswith(";"):
                self.lines.append("    " + l); continue
            if l.endswith(":"):
                self.lines.append(l); continue
            if l.startswith("."):
                self.lines.append("    " + l); continue
            ins = Ins(l)
            if self.auto:
                need, dist = 0, 0
                for p in reversed(self.hist):
                    need = max(need, need_states(p, ins) - dist)
                    dist += p.states
                    if dist > 16:
                        break
                if need > 0:
                    nop = Ins("s_nop %d" % (need - 1))
                    self.hist.append(nop); self.lines.append("    " + nop.text); self.nops += 1
            self.hist.append(ins)
            if len(self.hist) > 40:
                self.hist = self.hist[-30:]
            self.lines.append("    " + l)
            if self.hook: self.hook(ins)
    hook = None
    def label(self, prefix="L"):
        self.nlabel += 1
        return "%s_%s_%d" % (prefix, self.name, self.nlabel)
    def vmem(self, s, tag=None):
        self(s); self.vm.append(tag)
        assert len(self.vm) <= 63, "vmcnt overflow in " + self.name
    def lds(self, s, tag=None):
        self(s); self.lg.append(tag)
    def _n_after(self, q, tags):
        idx = [i for i, t in enumerate(q) if t in tags]
        return None if not idx else len(q) - 1 - max(idx)
    def wait(self, vm=(), lg=(), force=False):
        parts = []
        if isinstance(vm, str): vm = (vm,)
        if isinstance(lg, str): lg = (lg,)
        n = self._n_after(self.vm, vm)
        if n is not None:
            parts.append("vmcnt(%d)" % n); self.vm = self.vm[len(self.vm) - n:] if n else []
        n = self._n_after(self.lg, lg)
        if n is not None:
            n = min(n, 15)
            parts.append("lgkmcnt(%d)" % n); self.lg = self.lg[len(self.lg) - n:] if n else []
        if parts:
            self("s_waitcnt " + " ".join(parts))
    def wait_all(self, vm=True, lg=True):
        parts = []
        if vm: parts.append("vmcnt(0)"); self.vm = []
        if lg: parts.append("lgkmcnt(0)"); self.lg = []
        self("s_waitcnt " + " ".join(parts))
    def text(self):
        return "\n".join(self.lines) + "\n"

def vr(b, n=1, c="v"):
    return "%s%d" % (c, b) if n == 1 else "%s[%d:%d]" % (c, b, b + n - 1)
def ar(b, n=1):
    return vr(b, n, "a")
def sr(b, n=1):
    return vr(b, n, "s")

def kernel_head(name):
    return ".globl %s\n.p2align 8\n.type %s,@function\n%s:\n" % (name, name, name)

def kernel_desc(name, vgpr=256, accum=None, sgpr=102):
    if accum is None:
        accum = min(256, (vgpr + 3) // 4 * 4)
    return (""".p2align 6
.amdhsa_kernel %s
  .amdhsa_next_free_vgpr %d
  .amdhsa_next_free_sgpr %d
  .amdhsa_accum_offset %d
  .amdhsa_group_segment_fixed_size 0
  .amdhsa_kernarg_size 120
  .amdhsa_user_sgpr_count 2
  .amdhsa_user_sgpr_kernarg_segment_ptr 1
  .amdhsa_system_sgpr_workgroup_id_x 1
  .amdhsa_float_denorm_mode_32 3
.end_amdhsa_kernel
""" % (name, vgpr, sgpr, accum))

def build(launches, kernels, header=""):
    s = header
    for n, g, b, l in launches:
        s += "; @launch kernel=%s grid=(%d,1,1) block=(%d,1,1) lds=%d\n" % (n, g, b, l)
    s += '.amdgcn_target "amdgcn-amd-amdhsa--gfx950"\n.text\n'
    for n, body, v, a, sg in kernels:
        s += kernel_head(n) + body
    s += '.section .rodata,"a"\n'
    for n, body, v, a, sg in kernels:
        s += kernel_desc(n, v, a, sg)
    return s
```

```python
import sys, struct
from asmlib import *

S, D, F = 2048, 640, 1728
A_Q, A_K, A_V, A_SK, A_SSMK, A_SSMD, A_WG, A_WU, A_WD, A_C, A_WM, A_OUT, A_DBG, A_WS = 0, 8, 16, 24, 32, 40, 56, 64, 72, 80, 88, 96, 104, 112
WS_KVT, WS_YY, WS_H2F, WS_X1, WS_HH, WS_WDF, WS_MOD = 0, 0x300000, 0x600000, 0x900000, 0xC00000, 0x1300000, 0x1600000
SZ_SD = S * D * 2
SZ_HH = S * F * 2
SZ_W = D * F * 2
OPT = dict(RK=1, RY=1, RL=1, RG=1)
for a in sys.argv[1:]:
    if "=" in a:
        x, y = a.split("="); OPT[x] = int(y) if y.lstrip("-").isdigit() else y
MASK = "s99"

def f32bits(x):
    return "0x%08x" % struct.unpack("<I", struct.pack("<f", x))[0]

def ldptr(k, s, off):
    k("s_load_dwordx2 %s, s[0:1], %d" % (sr(s, 2), off))
def srd(k, d, p, nbytes, off=0):
    if off:
        k("s_add_u32 s%d, s%d, 0x%x\ns_addc_u32 s%d, s%d, 0" % (d, p, off, d + 1, p + 1))
        k("s_and_b32 s%d, s%d, 0xffff" % (d + 1, d + 1))
    else:
        k("s_mov_b32 s%d, s%d\ns_and_b32 s%d, s%d, 0xffff" % (d, p, d + 1, p + 1))
    k("s_mov_b32 s%d, 0x%x\ns_mov_b32 s%d, 0x20000" % (d + 2, nbytes, d + 3))
def unpack(k, lo, hi, src):
    k("v_lshlrev_b32 v%d, 16, v%d\nv_and_b32 v%d, %s, v%d" % (lo, src, hi, MASK, src))
def rnd2(k, a, tmp, on=1):
    if on:
        k("v_cvt_pk_bf16_f32 v%d, v%d, v%d" % (tmp, a, a + 1))
        unpack(k, a, a + 1, tmp)
def rndn(k, regs, tmps, on=1):
    if not on: return
    for i in range(0, len(regs), len(tmps)):
        grp = regs[i:i + len(tmps)]
        for a, t in zip(grp, tmps): k("v_cvt_pk_bf16_f32 v%d, v%d, v%d" % (t, a, a + 1))
        for a, t in zip(grp, tmps): unpack(k, a, a + 1, t)
def rnd1(k, a):
    k("v_cvt_pk_bf16_f32 v%d, v%d, v%d\nv_lshlrev_b32 v%d, 16, v%d" % (a, a, a, a, a))
def wave_id(k, s, vt):
    k("v_lshrrev_b32 v%d, 6, v0\nv_readfirstlane_b32 s%d, v%d" % (vt, s, vt))

def p1a(k, end):
    ldptr(k, 4, A_K); ldptr(k, 6, A_V); ldptr(k, 8, A_SK); ldptr(k, 10, A_WS)
    k("s_and_b32 s20, s2, 7\ns_lshr_b32 s21, s2, 3\ns_mov_b32 %s, 0xffff0000" % MASK)
    k("v_cmp_gt_u32 vcc, 160, v0\ns_and_saveexec_b64 s[30:31], vcc\ns_cbranch_execz %s" % end)
    k("""
    v_lshrrev_b32 v1, 3, v0
    v_and_b32 v2, 7, v0
    v_lshlrev_b32 v2, 3, v2
    s_lshl_b32 s22, s21, 6
    v_add_u32 v2, s22, v2
    s_mul_i32 s23, s20, 80
    v_lshlrev_b32 v1, 2, v1
    v_add_u32 v1, s23, v1
    v_mul_u32_u24 v3, 1280, v2
    v_lshl_add_u32 v3, v1, 1, v3
    v_subrev_u32 v4, 3840, v3
    v_cmp_eq_u32 vcc, 0, v2
    v_mov_b32 v5, 0x7ff00000
    v_cndmask_b32 v4, v4, v5, vcc
    v_lshlrev_b32 v5, 3, v1
    v_lshlrev_b32 v6, 12, v1
    v_lshl_add_u32 v6, v2, 1, v6
    s_movk_i32 s24, 3840
    s_movk_i32 s25, 7680
    s_movk_i32 s26, 4096
    s_movk_i32 s27, 8192
    s_movk_i32 s28, 12288
    s_waitcnt lgkmcnt(0)
    """)
    srd(k, 12, 4, SZ_SD); srd(k, 16, 6, SZ_SD); srd(k, 32, 8, D * 8); srd(k, 36, 10, SZ_SD, WS_KVT)
    KR, VR, SR_, SF, KF, VF, OUT, T = 8, 30, 46, 56, 72, 116, 148, 180
    k.vmem("buffer_load_dwordx4 %s, v5, s[32:35], 0 offen" % vr(SR_, 4), "sk")
    k.vmem("buffer_load_dwordx4 %s, v5, s[32:35], 0 offen offset:16" % vr(SR_ + 4, 4), "sk")
    so = ["0", "s24", "s25"]
    for r in range(3):
        k.vmem("buffer_load_dwordx2 %s, v4, s[12:15], 0 offen offset:%d" % (vr(KR + 2 * r, 2), 1280 * r), "k")
    for r in range(8):
        k.vmem("buffer_load_dwordx2 %s, v3, s[12:15], %s offen offset:%d" % (vr(KR + 6 + 2 * r, 2), so[r // 3], 1280 * (r % 3)), "k")
    for r in range(8):
        k.vmem("buffer_load_dwordx2 %s, v3, s[16:19], %s offen offset:%d" % (vr(VR + 2 * r, 2), so[r // 3], 1280 * (r % 3)), "v")
    k.wait(vm="sk")
    for c in range(4):
        unpack(k, SF + 0 + c, SF + 4 + c, SR_ + 2 * c)
        unpack(k, SF + 8 + c, SF + 12 + c, SR_ + 2 * c + 1)
    k.wait(vm="k")
    for r in range(11):
        unpack(k, KF + 4 * r, KF + 4 * r + 1, KR + 2 * r); unpack(k, KF + 4 * r + 2, KF + 4 * r + 3, KR + 2 * r + 1)
    P, TM = T, T + 8
    for i0 in range(0, 8, 2):
        items = [(i, p) for i in (i0, i0 + 1) for p in (0, 1)]
        acc = [OUT + 4 * i + 2 * p for i, p in items]
        prod = [P + 2 * n for n in range(4)]
        tm = [TM + n for n in range(4)]
        for a, (i, p) in zip(acc, items):
            k("v_pk_mul_f32 %s, %s, %s" % (vr(a, 2), vr(KF + 4 * i + 2 * p, 2), vr(SF + 12 + 2 * p, 2)))
        rndn(k, acc, tm, OPT["RK"])
        for j in (2, 1, 0):
            if OPT["RK"]:
                for t, (i, p) in zip(prod, items):
                    k("v_pk_mul_f32 %s, %s, %s" % (vr(t, 2), vr(KF + 4 * (i + 3 - j) + 2 * p, 2), vr(SF + 4 * j + 2 * p, 2)))
                rndn(k, prod, tm)
                for a, t in zip(acc, prod):
                    k("v_pk_add_f32 %s, %s, %s" % (vr(a, 2), vr(a, 2), vr(t, 2)))
                rndn(k, acc, tm)
            else:
                for a, (i, p) in zip(acc, items):
                    k("v_pk_fma_f32 %s, %s, %s, %s" % (vr(a, 2), vr(KF + 4 * (i + 3 - j) + 2 * p, 2), vr(SF + 4 * j + 2 * p, 2), vr(a, 2)))
    k.wait(vm="v")
    for r in range(8):
        unpack(k, VF + 4 * r, VF + 4 * r + 1, VR + 2 * r); unpack(k, VF + 4 * r + 2, VF + 4 * r + 3, VR + 2 * r + 1)
    for r in range(16):
        k("v_pk_mul_f32 %s, %s, %s" % (vr(OUT + 2 * r, 2), vr(OUT + 2 * r, 2), vr(VF + 2 * r, 2)))
    so = ["0", "s26", "s27", "s28"]
    for c in range(4):
        for jj in range(4):
            k("v_cvt_pk_bf16_f32 v%d, v%d, v%d" % (KF + 4 * c + jj, OUT + 4 * (7 - 2 * jj) + c, OUT + 4 * (6 - 2 * jj) + c))
        k.vmem("buffer_store_dwordx4 %s, v6, s[36:39], %s offen" % (vr(KF + 4 * c, 4), so[c]))
    k("s_branch %s" % end)

def modrole(k, end, sid):
    ldptr(k, 4, A_C); ldptr(k, 6, A_WM); ldptr(k, 10, A_WS)
    k("s_mov_b32 %s, 0xffff0000" % MASK)
    wave_id(k, 21, 1)
    k("""
    v_and_b32 v1, 7, v0
    v_lshrrev_b32 v2, 3, v0
    v_mul_u32_u24 v3, 0x25800, v2
    v_lshl_add_u32 v3, v1, 4, v3
    s_lshl_b32 s22, s%d, 7
    v_add_u32 v3, s22, v3
    v_lshlrev_b32 v4, 3, v0
    s_waitcnt lgkmcnt(0)
    """ % sid)
    srd(k, 12, 4, D * 2); srd(k, 16, 6, D * 3840 * 2); srd(k, 36, 10, 6 * D * 4, WS_MOD)
    W, SV, ACC, T = 16, 96, 116, 124
    k.vmem("buffer_load_dwordx2 v[8:9], v4, s[12:15], 0 offen", "c")
    for i in range(20):
        k("s_mov_b32 s23, %d" % (i * 7680))
        k.vmem("buffer_load_dwordx4 %s, v3, s[16:19], s23 offen" % vr(W + 4 * i, 4), "w%d" % i)
    k.wait(vm="c")
    unpack(k, 10, 11, 8); unpack(k, 12, 13, 9)
    for i in range(4):
        k("v_mul_f32 v%d, %s, v%d" % (T + i, f32bits(-1.4426950408889634), 10 + i))
    for i in range(4): k("v_exp_f32 v%d, v%d" % (T + i, T + i))
    for i in range(4): k("v_add_f32 v%d, 1.0, v%d" % (T + i, T + i))
    for i in range(4): k("v_rcp_f32 v%d, v%d" % (T + i, T + i))
    for i in range(4): k("v_mul_f32 v%d, v%d, v%d" % (T + i, T + i, 10 + i))
    rndn(k, [T, T + 2], [8, 9])
    k("v_lshlrev_b32 v4, 4, v0")
    k.lds("ds_write_b128 v4, %s" % vr(T, 4))
    k.wait_all(vm=False)
    k("s_barrier\nv_mul_u32_u24 v4, 80, v2")
    for i in range(5):
        k.lds("ds_read_b128 %s, v4 offset:%d" % (vr(SV + 4 * i, 4), 16 * i))
    k.wait_all(vm=False)
    for i in range(20):
        k.wait(vm="w%d" % i)
        for c in range(4):
            unpack(k, T + 2 * c, T + 2 * c + 1, W + 4 * i + c)
        sv = SV + i
        sel = "op_sel:[0,1] op_sel_hi:[1,1]" if sv & 1 else "op_sel_hi:[1,0]"
        for c in range(4):
            if i == 0:
                k("v_pk_mul_f32 %s, %s, %s %s" % (vr(ACC + 2 * c, 2), vr(T + 2 * c, 2), vr(sv & ~1, 2), sel))
            else:
                k("v_pk_fma_f32 %s, %s, %s, %s %s" % (vr(ACC + 2 * c, 2), vr(T + 2 * c, 2), vr(sv & ~1, 2), vr(ACC + 2 * c, 2),
                  "op_sel:[0,1,0] op_sel_hi:[1,1,1]" if sv & 1 else "op_sel_hi:[1,0,1]"))
    k("v_lshlrev_b32 v4, 5, v0")
    k.lds("ds_write_b128 v4, %s offset:4096" % vr(ACC, 4))
    k.lds("ds_write_b128 v4, %s offset:4112" % vr(ACC + 4, 4))
    k.wait_all(vm=False)
    k("s_barrier\ns_cmp_lg_u32 s21, 0\ns_cbranch_scc1 %s" % end)
    k("v_lshlrev_b32 v4, 2, v0")
    for i in range(32):
        k.lds("ds_read_b32 v%d, v4 offset:%d" % (W + i, 4096 + 256 * i))
        if i == 14: k.wait_all(vm=False)
    k.wait_all(vm=False)
    for st in (16, 8, 4, 2, 1):
        for i in range(st):
            k("v_add_f32 v%d, v%d, v%d" % (W + i, W + i, W + i + st))
    rnd1(k, W)
    k("v_add_f32 v%d, 1.0, v%d" % (W + 1, W))
    rnd1(k, W + 1)
    k("""
    s_mul_i32 s23, s%d, 205
    s_lshr_b32 s23, s23, 11
    s_cmp_eq_u32 s23, 1
    s_cselect_b32 s24, 1, 0
    s_cmp_eq_u32 s23, 4
    s_cselect_b32 s24, 1, s24
    s_cmp_eq_u32 s24, 1
    s_cselect_b64 vcc, -1, 0
    v_cndmask_b32 v%d, v%d, v%d, vcc
    s_lshl_b32 s22, s%d, 8
    """ % (sid, W, W, W + 1, sid))
    k.vmem("buffer_store_dword v%d, v4, s[36:39], s22 offen" % W)
    k("s_branch %s" % end)

def wdrole(k, end, sid):
    ldptr(k, 4, A_WD); ldptr(k, 10, A_WS)
    wave_id(k, 21, 1)
    k("""
    v_and_b32 v1, 63, v0
    v_lshlrev_b32 v2, 4, v1
    s_mul_i32 s22, s21, 10240
    v_add_u32 v3, s22, v2
    s_mul_i32 s23, s%d, 40960
    v_lshrrev_b32 v4, 2, v1
    v_and_b32 v5, 3, v1
    v_mul_u32_u24 v4, 1280, v4
    s_mul_i32 s24, s21, 320
    v_add_u32 v4, s24, v4
    v_lshl_add_u32 v6, v5, 4, v4
    v_lshl_add_u32 v7, v5, 3, v4
    s_waitcnt lgkmcnt(0)
    """ % sid)
    srd(k, 12, 4, SZ_W); srd(k, 36, 10, SZ_W, WS_WDF)
    for n in range(10):
        if n % 4 == 0:
            k("s_add_u32 m0, s22, %d\ns_add_u32 s25, s23, %d" % ((n // 4) * 4096, (n // 4) * 4096))
        k.vmem("buffer_load_dwordx4 v3, s[12:15], s25 offen offset:%d lds" % ((n % 4) * 1024))
    k.wait_all(lg=False)
    k("s_barrier")
    for cc in range(2):
        for ct in range(5):
            b = 8 + 4 * (5 * cc + ct)
            for t in range(2):
                if ct < 4:
                    k.lds("ds_read_b64_tr_b16 %s, v6 offset:%d" % (vr(b + 2 * t, 2), t * 20480 + cc * 160 + (ct >> 1) * 64 + (ct & 1) * 8), (cc, ct))
                else:
                    k.lds("ds_read_b64_tr_b16 %s, v7 offset:%d" % (vr(b + 2 * t, 2), t * 20480 + cc * 160 + 128), (cc, ct))
        k("s_lshl_b32 s25, s21, 1\ns_add_u32 s25, s25, %d\ns_mul_i32 s25, s25, 54\ns_add_u32 s25, s25, s%d\ns_mul_i32 s25, s25, 5120" % (cc, sid))
        for ct in range(5):
            b = 8 + 4 * (5 * cc + ct)
            k.wait(lg=[(cc, ct)])
            if ct == 4: k("s_add_u32 s25, s25, 4096")
            k.vmem("buffer_store_dwordx4 %s, v2, s[36:39], s25 offen offset:%d" % (vr(b, 4), (ct % 4) * 1024))
    k("s_branch %s" % end)

def k_prep():
    k = K("prep")
    end = "Lend_prep"
    l1, l2 = k.label(), k.label()
    k("s_cmp_ge_u32 s2, 370\ns_cbranch_scc1 %s" % end)
    k("s_cmp_ge_u32 s2, 316\ns_cbranch_scc1 %s" % l2)
    k("s_cmp_ge_u32 s2, 256\ns_cbranch_scc1 %s" % l1)
    p1a(k, end)
    k(l1 + ":"); k.vm = []; k.lg = []
    k("s_sub_u32 s40, s2, 256")
    modrole(k, end, 40)
    k(l2 + ":"); k.vm = []; k.lg = []
    k("s_sub_u32 s40, s2, 316")
    wdrole(k, end, 40)
    k(end + ":\ns_endpgm")
    return ("prep_kernel", k.text(), 192, None, 102)

KCOPY = 4160
CW = 4 * KCOPY + 4608
CSTAGE = 4 * CW
def k_conv():
    k = K("conv")
    end = "Lend_conv"
    k("s_cmp_ge_u32 s2, 256\ns_cbranch_scc1 %s" % end)
    k("s_and_b32 s20, s2, 7\ns_lshr_b32 s22, s2, 3\ns_cmp_ge_u32 s22, 20\ns_cbranch_scc1 %s" % end)
    ldptr(k, 4, A_SSMK); ldptr(k, 6, A_SSMD); ldptr(k, 10, A_WS)
    k("s_mov_b32 %s, 0xffff0000" % MASK)
    wave_id(k, 21, 1)
    k("""
    s_mul_i32 s23, s20, 80
    s_lshl_b32 s24, s22, 2
    s_add_u32 s23, s23, s24
    s_add_u32 s24, s23, s21
    s_mul_i32 s25, s21, %d
    s_lshl_b32 s26, s24, 12
    v_and_b32 v1, 63, v0
    v_lshlrev_b32 v2, 4, v1
    v_add_u32 v2, s26, v2
    v_and_b32 v3, 15, v1
    v_lshrrev_b32 v4, 4, v1
    v_add_u32 v5, v3, v4
    v_subrev_u32 v5, 16, v5
    v_cmp_gt_i32 vcc, 0, v5
    v_lshlrev_b32 v5, 1, v5
    v_add_u32 v5, s26, v5
    v_mov_b32 v6, 0x7ff00000
    v_cndmask_b32 v5, v5, v6, vcc
    v_mul_u32_u24 v6, %d, v4
    v_lshl_add_u32 v6, v3, 1, v6
    v_add_u32 v6, s25, v6
    s_lshr_b32 s27, s24, 1
    s_lshl_b32 s27, s27, 2
    s_waitcnt lgkmcnt(0)
    s_load_dword s28, s[6:7], s27
    """ % (CW, KCOPY))
    srd(k, 12, 4, D * S * 2); srd(k, 16, 10, SZ_SD, WS_KVT); srd(k, 36, 10, SZ_SD, WS_YY)
    k.vmem("buffer_load_ushort v7, v5, s[12:15], 0 offen", "patch")
    k("s_add_u32 m0, s25, %d" % (4 * KCOPY + 512))
    for n in range(4):
        k.vmem("buffer_load_dwordx4 v2, s[16:19], 0 offen offset:%d lds" % (n * 1024))
    for c in range(4):
        k("s_add_u32 m0, s25, %d" % (c * KCOPY + 32))
        for n in range(4):
            k.vmem("buffer_load_dwordx4 v2, s[12:15], %d offen offset:%d lds" % (2 * c, n * 1024))
    k("""
    v_mov_b32 v8, 0
    v_mov_b32 v9, 0
    v_lshlrev_b32 v10, 3, v1
    v_add_u32 v10, s25, v10
    ds_write_b64 v10, v[8:9] offset:%d
    v_add_u32 v11, 1, v3
    v_and_b32 v12, 3, v11
    v_lshrrev_b32 v11, 2, v11
    v_mul_u32_u24 v12, %d, v12
    v_lshlrev_b32 v13, 1, v4
    v_sub_u32 v11, v11, v13
    v_add_u32 v11, 2, v11
    v_lshl_add_u32 v12, v11, 3, v12
    v_add_u32 v12, 32, v12
    v_add_u32 v12, s25, v12
    v_lshl_add_u32 v13, v3, 1, v4
    v_lshlrev_b32 v13, 4, v13
    s_add_u32 s29, s25, %d
    v_add_u32 v13, s29, v13
    """ % (4 * KCOPY, KCOPY, 4 * KCOPY + 480))
    VF_, VX = 12, 13
    k.wait(vm="patch")
    k("ds_write_b16 v6, v7")
    k("""
    v_lshrrev_b32 v14, 1, v4
    v_lshl_add_u32 v14, v3, 1, v14
    v_lshlrev_b32 v14, 4, v14
    v_and_b32 v15, 1, v4
    v_xor_b32 v15, 1, v15
    v_lshl_add_u32 v14, v15, 3, v14
    s_add_u32 s29, s25, %d
    v_add_u32 v14, s29, v14
    """ % (4 * KCOPY + 512))
    k.wait_all()
    ACC, FB, XB = 16, 48, 80
    def ldF(a):
        k.lds("ds_read_b64 %s, v%d offset:%d" % (vr(FB + 4 * a, 2), VF_, 512 * a), ("F", a))
        k.lds("ds_read_b64 %s, v%d offset:%d" % (vr(FB + 4 * a + 2, 2), VF_, 512 * a + 8), ("F", a))
    def ldX(b):
        k.lds("ds_read_b128 %s, v%d offset:%d" % (vr(XB + 4 * b, 4), VX, 512 * b), ("X", b))
    for i in range(32): k("v_mov_b32 v%d, 0" % (ACC + i))
    for a in range(8):
        ldX(7 - a); ldF(a)
    k("v_add_u32 v%d, 64, v%d\nv_subrev_u32 v%d, 64, v%d\ns_mov_b32 s30, 0" % (VF_, VF_, VX, VX))
    def body():
        for a in range(8):
            for b in range(7 - a, -1, -1):
                k.wait(lg=[("F", a), ("X", b)])
                u = a + b
                k("v_mfma_f32_16x16x32_bf16 %s, %s, %s, %s" % (vr(ACC + 4 * u, 4), vr(FB + 4 * a, 4), vr(XB + 4 * b, 4), vr(ACC + 4 * u, 4)))
                if b == 7 - a: ldX(b)
            ldF(a)
        k("v_add_u32 v%d, 64, v%d\nv_subrev_u32 v%d, 64, v%d" % (VF_, VF_, VX, VX))
    state0 = list(k.lg)
    lp = k.label()
    k(lp + ":")
    body()
    assert k.lg == state0[len(state0) - len(k.lg):], (k.lg, state0)
    k("s_add_u32 s30, s30, 1\ns_cmp_lt_u32 s30, 8\ns_cbranch_scc1 %s" % lp)
    k.wait_all(vm=False)
    KV = FB
    for u in range(8):
        k.lds("ds_read_b64 %s, v14 offset:%d" % (vr(KV + 2 * u, 2), 512 * u), ("kv", u))
    k("""
    s_and_b32 s27, s24, 1
    s_lshl_b32 s27, s27, 4
    s_lshr_b32 s28, s28, s27
    s_lshl_b32 s28, s28, 16
    v_mov_b32 v8, s28
    v_mov_b32 v9, s28
    v_and_b32 v10, 14, v3
    s_lshl_b32 s27, s21, 2
    v_add_u32 v11, s27, v4
    v_xor_b32 v10, v10, v11
    v_lshlrev_b32 v10, 3, v10
    v_lshl_add_u32 v10, v3, 7, v10
    v_add_u32 v10, %d, v10
    """ % CSTAGE)
    T = XB
    for u in range(8):
        k.wait(lg=[("kv", u)])
        a = ACC + 4 * u
        unpack(k, T + 3, T + 2, KV + 2 * u); unpack(k, T + 1, T + 0, KV + 2 * u + 1)
        if OPT["RY"]:
            k("v_pk_mul_f32 %s, %s, v[8:9]\nv_pk_mul_f32 %s, %s, v[8:9]" % (vr(T, 2), vr(T, 2), vr(T + 2, 2), vr(T + 2, 2)))
            rndn(k, [T, T + 2, a, a + 2], [T + 4, T + 5, T + 6, T + 7])
            k("v_pk_add_f32 %s, %s, %s\nv_pk_add_f32 %s, %s, %s" % (vr(a, 2), vr(a, 2), vr(T, 2), vr(a + 2, 2), vr(a + 2, 2), vr(T + 2, 2)))
        else:
            k("v_pk_fma_f32 %s, %s, v[8:9], %s\nv_pk_fma_f32 %s, %s, v[8:9], %s" % (vr(a, 2), vr(T, 2), vr(a, 2), vr(a + 2, 2), vr(T + 2, 2), vr(a + 2, 2)))
        o = T + 8 + 2 * (u & 1)
        k("v_cvt_pk_bf16_f32 v%d, v%d, v%d\nv_cvt_pk_bf16_f32 v%d, v%d, v%d" % (o, a, a + 1, o + 1, a + 2, a + 3))
        k.lds("ds_write_b64 v10, %s offset:%d" % (vr(o, 2), 2048 * u))
    k.wait_all(vm=False)
    k("s_barrier")
    k("""
    v_lshrrev_b32 v1, 3, v0
    v_and_b32 v2, 7, v0
    v_and_b32 v3, 14, v1
    v_lshlrev_b32 v4, 1, v2
    v_xor_b32 v4, v4, v3
    v_lshlrev_b32 v4, 3, v4
    v_lshl_add_u32 v4, v1, 7, v4
    v_add_u32 v4, %d, v4
    v_mul_u32_u24 v5, 20480, v1
    v_lshl_add_u32 v5, v2, 4, v5
    s_lshl_b32 s27, s23, 5
    v_add_u32 v5, s27, v5
    """ % CSTAGE)
    for i in range(4):
        k.lds("ds_read_b128 %s, v4 offset:%d" % (vr(16 + 4 * i, 4), 4096 * i), i)
    for i in range(4):
        k.wait(lg=[i])
        k("s_mov_b32 s27, %d" % (32 * 20480 * i))
        k.vmem("buffer_store_dwordx4 %s, v5, s[36:39], s27 offen" % vr(16 + 4 * i, 4))
    k(end + ":\ns_endpgm")
    return ("conv_kernel", k.text(), 128, None, 102), CSTAGE + 16384

def reduce_rows(k, v, t, region, vaddr_w, vaddr_r):
    k("v_add_f32 v%d, v%d, v%d row_ror:8 row_mask:0xf bank_mask:0xf" % (v, v, v))
    k("v_mov_b32 v%d, v%d\nv_permlane16_swap_b32 v%d, v%d\nv_add_f32 v%d, v%d, v%d" % (t, v, v, t, v, v, t))
    k("v_mov_b32 v%d, v%d\nv_permlane32_swap_b32 v%d, v%d\nv_add_f32 v%d, v%d, v%d" % (t, v, v, t, v, v, t))
    k.lds("ds_write_b32 v%d, v%d offset:%d" % (vaddr_w, v, region))
    k.wait_all(vm=False)
    k("s_barrier")
    k.lds("ds_read_b128 %s, v%d offset:%d" % (vr(t, 4), vaddr_r, region))
    k.wait_all(vm=False)
    k("v_pk_add_f32 %s, %s, %s\nv_add_f32 v%d, v%d, v%d" % (vr(t, 2), vr(t, 2), vr(t + 2, 2), v, t, t + 1))

def layernorm(k, X, N, T, region, vw, vrd):
    R = OPT["RL"]
    s, m, ri = T, T + 4, T + 6
    t4 = T
    k("v_pk_add_f32 %s, %s, %s" % (vr(N, 2), vr(X, 2), vr(X + 2, 2)))
    for i in range(2, 10): k("v_pk_add_f32 %s, %s, %s" % (vr(N, 2), vr(N, 2), vr(X + 2 * i, 2)))
    k("v_add_f32 v%d, v%d, v%d" % (m, N, N + 1))
    reduce_rows(k, m, t4, region, vw, vrd)
    k("v_mul_f32 v%d, %s, v%d" % (m, f32bits(1.0 / 640), m))
    for i in range(10):
        k("v_pk_add_f32 %s, %s, %s op_sel_hi:[1,0] neg_lo:[0,1] neg_hi:[0,1]" % (vr(N + 2 * i, 2), vr(X + 2 * i, 2), vr(m, 2)))
    k("v_pk_mul_f32 %s, %s, %s" % (vr(t4, 2), vr(N, 2), vr(N, 2)))
    for i in range(1, 10): k("v_pk_fma_f32 %s, %s, %s, %s" % (vr(t4, 2), vr(N + 2 * i, 2), vr(N + 2 * i, 2), vr(t4, 2)))
    k("v_add_f32 v%d, v%d, v%d" % (ri, t4, t4 + 1))
    reduce_rows(k, ri, t4, region + 128, vw, vrd)
    k("v_mul_f32 v%d, %s, v%d" % (ri, f32bits(1.0 / 640), ri))
    if R: rnd1(k, ri)
    k("v_add_f32 v%d, %s, v%d" % (ri, f32bits(1e-5), ri))
    if R: rnd1(k, ri)
    k("v_sqrt_f32 v%d, v%d" % (ri, ri))
    if R: rnd1(k, ri)
    k("v_rcp_f32 v%d, v%d" % (ri, ri))
    if R:
        rnd1(k, m)
        for i in range(10):
            k("v_pk_add_f32 %s, %s, %s op_sel_hi:[1,0] neg_lo:[0,1] neg_hi:[0,1]" % (vr(N + 2 * i, 2), vr(X + 2 * i, 2), vr(m, 2)))
        rndn(k, [N + 2 * i for i in range(10)], [t4, t4 + 1, t4 + 2, t4 + 3])
    for i in range(10):
        k("v_pk_mul_f32 %s, %s, %s op_sel_hi:[1,0]" % (vr(N + 2 * i, 2), vr(N + 2 * i, 2), vr(ri, 2)))
    rndn(k, [N + 2 * i for i in range(10)], [t4, t4 + 1, t4 + 2, t4 + 3], R)

def ew(k, op, dst, a, b, rnd, tm):
    for i in range(10):
        k("%s %s, %s, %s" % (op, vr(dst + 2 * i, 2), vr(a + 2 * i, 2), vr(b + 2 * i, 2)))
    rndn(k, [dst + 2 * i for i in range(10)], tm, rnd)
def ewfma(k, dst, a, b, c):
    for i in range(10):
        k("v_pk_fma_f32 %s, %s, %s, %s" % (vr(dst + 2 * i, 2), vr(a + 2 * i, 2), vr(b + 2 * i, 2), vr(c + 2 * i, 2)))

def k_ln():
    k = K("ln")
    end = "Lend_ln"
    k("s_cmp_ge_u32 s2, 256\ns_cbranch_scc1 %s" % end)
    ldptr(k, 4, A_Q); ldptr(k, 10, A_WS)
    k("s_mov_b32 %s, 0xffff0000" % MASK)
    wave_id(k, 21, 1)
    k("""
    s_and_b32 s20, s2, 7
    s_lshr_b32 s22, s2, 3
    s_lshl_b32 s23, s20, 5
    s_add_u32 s23, s23, s22
    s_lshr_b32 s24, s23, 1
    s_and_b32 s25, s23, 1
    s_mul_i32 s26, s21, 160
    v_and_b32 v1, 63, v0
    v_and_b32 v2, 7, v1
    v_lshrrev_b32 v3, 3, v1
    v_lshlrev_b32 v4, 2, v3
    v_add_u32 v4, s26, v4
    s_lshl_b32 s27, s23, 3
    v_add_u32 v5, s27, v2
    v_mul_u32_u24 v5, 1280, v5
    v_lshl_add_u32 v5, v4, 1, v5
    v_lshlrev_b32 v6, 2, v4
    v_add_u32 v7, s26, v1
    v_lshlrev_b32 v7, 5, v7
    s_mul_i32 s27, s24, 20480
    s_lshl_b32 s28, s25, 4
    s_add_u32 s27, s27, s28
    s_mul_i32 s28, s21, 3072
    v_lshrrev_b32 v8, 4, v1
    v_lshlrev_b32 v8, 3, v8
    v_bfe_u32 v9, v1, 1, 1
    v_lshl_add_u32 v8, v9, 2, v8
    v_bfe_u32 v9, v1, 2, 2
    v_add_u32 v8, v8, v9
    v_lshlrev_b32 v8, 4, v8
    v_and_b32 v9, 1, v1
    v_lshl_add_u32 v8, v9, 3, v8
    v_add_u32 v8, s28, v8
    v_lshlrev_b32 v10, 4, v2
    s_lshl_b32 s29, s21, 2
    v_add_u32 v9, s29, v10
    v_and_b32 v11, 3, v3
    v_lshlrev_b32 v11, 4, v11
    s_lshl_b32 s29, s25, 3
    v_add_u32 v11, s29, v11
    v_add_u32 v11, v11, v2
    v_lshlrev_b32 v11, 4, v11
    v_lshrrev_b32 v12, 2, v3
    v_lshl_add_u32 v11, v12, 3, v11
    s_mul_i32 s29, s24, 20
    s_mul_i32 s30, s21, 5
    s_add_u32 s29, s29, s30
    s_lshl_b32 s29, s29, 10
    v_add_u32 v11, s29, v11
    s_waitcnt lgkmcnt(0)
    """)
    srd(k, 12, 4, SZ_SD); srd(k, 16, 10, SZ_SD, WS_YY); srd(k, 32, 10, 6 * D * 4, WS_MOD)
    srd(k, 36, 10, SZ_SD, WS_H2F); srd(k, 40, 10, SZ_SD, WS_X1)
    RAW, X, N, Y, M, T = 14, 24, 44, 64, 84, 184
    RED = 12288
    for t in range(5):
        k.vmem("buffer_load_dwordx2 %s, v5, s[12:15], 0 offen offset:%d" % (vr(RAW + 2 * t, 2), 64 * t), "q")
    for n in range(3):
        k("s_add_u32 m0, s28, %d" % (1024 * n))
        k("s_add_u32 s30, s27, %d" % (2048 * n))
        k.vmem("buffer_load_dwordx4 v7, s[16:19], s30 offen lds", "yy")
    for vec in range(5):
        k("s_movk_i32 s30, %d" % (vec * 2560))
        for t in range(5):
            k.vmem("buffer_load_dwordx4 %s, v6, s[32:35], s30 offen offset:%d" % (vr(M + 20 * vec + 4 * t, 4), 128 * t), ("m", vec))
    SA, CA, GA, SB, CB = M, M + 20, M + 40, M + 60, M + 80
    tm = [T, T + 1, T + 2, T + 3]
    R = OPT["RL"]
    k.wait(vm="q")
    for t in range(5):
        unpack(k, X + 4 * t, X + 4 * t + 1, RAW + 2 * t); unpack(k, X + 4 * t + 2, X + 4 * t + 3, RAW + 2 * t + 1)
    layernorm(k, X, N, T, RED, 9, 10)
    k.wait(vm="yy")
    for t in range(5):
        k.lds("ds_read_b64_tr_b16 %s, v8 offset:%d" % (vr(RAW + 2 * t, 2), 512 * t))
    k.wait(vm=[("m", 1)])
    if R:
        ew(k, "v_pk_mul_f32", N, N, CA, 1, tm); ew(k, "v_pk_add_f32", N, N, SA, 1, tm)
    else:
        ewfma(k, N, N, CA, SA)
    k.wait_all(vm=False)
    for t in range(5):
        unpack(k, Y + 4 * t, Y + 4 * t + 1, RAW + 2 * t); unpack(k, Y + 4 * t + 2, Y + 4 * t + 3, RAW + 2 * t + 1)
    ew(k, "v_pk_mul_f32", N, N, Y, R, tm)
    k.wait(vm=[("m", 2)])
    if R:
        ew(k, "v_pk_mul_f32", N, N, GA, 1, tm); ew(k, "v_pk_add_f32", X, X, N, 0, tm)
    else:
        ewfma(k, X, N, GA, X)
    for t in range(5):
        k("v_cvt_pk_bf16_f32 v%d, v%d, v%d\nv_cvt_pk_bf16_f32 v%d, v%d, v%d" % (RAW + 2 * t, X + 4 * t, X + 4 * t + 1, RAW + 2 * t + 1, X + 4 * t + 2, X + 4 * t + 3))
        k.vmem("buffer_store_dwordx2 %s, v5, s[40:43], 0 offen offset:%d" % (vr(RAW + 2 * t, 2), 64 * t))
        unpack(k, X + 4 * t, X + 4 * t + 1, RAW + 2 * t); unpack(k, X + 4 * t + 2, X + 4 * t + 3, RAW + 2 * t + 1)
    layernorm(k, X, N, T, RED + 256, 9, 10)
    k.wait(vm=[("m", 4)])
    if R:
        ew(k, "v_pk_mul_f32", N, N, CB, 1, tm); ew(k, "v_pk_add_f32", N, N, SB, 0, tm)
    else:
        ewfma(k, N, N, CB, SB)
    for t in range(5):
        k("v_cvt_pk_bf16_f32 v%d, v%d, v%d\nv_cvt_pk_bf16_f32 v%d, v%d, v%d" % (Y + 2 * t, N + 4 * t, N + 4 * t + 1, Y + 2 * t + 1, N + 4 * t + 2, N + 4 * t + 3))
        k("s_movk_i32 s30, %d" % (1024 * t))
        k.vmem("buffer_store_dwordx2 %s, v11, s[36:39], s30 offen" % vr(Y + 2 * t, 2))
    k(end + ":\ns_endpgm")
    return ("ln_kernel", k.text(), 192, None, 102), RED + 512

G1_STAGE = 28672
def k_gemm1():
    k = K("g1")
    end = "Lend_g1"
    k("s_cmp_ge_u32 s2, 256\ns_cbranch_scc1 %s" % end)
    ldptr(k, 4, A_WG); ldptr(k, 6, A_WU); ldptr(k, 10, A_WS)
    k("s_mov_b32 %s, 0xffff0000" % MASK)
    wave_id(k, 21, 1)
    k("""
    s_and_b32 s20, s2, 7
    s_lshr_b32 s22, s2, 3
    s_lshr_b32 s23, s22, 1
    s_mul_i32 s23, s23, 101
    s_mul_i32 s23, s23, 4370
    s_lshr_b32 s23, s23, 16
    s_lshl_b32 s24, s20, 4
    s_and_b32 s25, s22, 1
    s_lshl_b32 s25, s25, 3
    s_add_u32 s24, s24, s25
    s_lshl_b32 s25, s21, 1
    s_add_u32 s24, s24, s25
    v_and_b32 v1, 63, v0
    v_lshlrev_b32 v2, 4, v1
    s_mul_i32 s25, s24, 20480
    v_add_u32 v3, s25, v2
    s_mul_i32 s25, s24, 55296
    v_add_u32 v4, s25, v2
    s_and_b32 s26, s21, 1
    s_mul_i32 s26, s26, %d
    s_lshl_b32 s27, s23, 5
    s_add_u32 s26, s26, s27
    s_mul_i32 s28, s21, 7168
    v_lshrrev_b32 v5, 2, v1
    v_mul_u32_u24 v5, 224, v5
    v_and_b32 v6, 3, v1
    v_lshl_add_u32 v5, v6, 3, v5
    v_add_u32 v6, %d, v5
    v_add_u32 v7, %d, v5
    """ % (32 * 3456, 2 * G1_STAGE, 4 * G1_STAGE))
    VO = 8
    for n in range(7):
        k("""
        v_add_u32 v16, %d, v1
        v_mul_u32_u24 v17, 4682, v16
        v_lshrrev_b32 v17, 16, v17
        v_mul_u32_u24 v18, 14, v17
        v_sub_u32 v16, v16, v18
        v_mul_u32_u24 v17, 3456, v17
        v_lshl_add_u32 v16, v16, 4, v17
        v_add_u32 v%d, s26, v16
        """ % (64 * n, VO + n))
    k("s_waitcnt lgkmcnt(0)\ns_cmp_ge_u32 s21, 2\ns_cselect_b32 s4, s6, s4\ns_cselect_b32 s5, s7, s5")
    srd(k, 12, 4, SZ_W); srd(k, 16, 10, SZ_SD, WS_H2F); srd(k, 36, 10, SZ_HH, WS_HH)
    ACC, FB, NB, LA = 16, 128, 5, 4
    def stage(s):
        k("s_mov_b32 s29, %d" % (s * 64 * 3456))
        for n in range(7):
            k("s_add_u32 m0, s28, %d" % ((s % 5) * G1_STAGE + n * 1024))
            k.vmem("buffer_load_dwordx4 v%d, s[12:15], s29 offen lds" % (VO + n), ("st", s))
        for ks in range(2):
            for rt in range(2):
                kb = 2 * s + ks
                k("s_mov_b32 s29, %d" % (rt * 20480 + kb * 1024))
                k.vmem("buffer_load_dwordx4 %s, v3, s[16:19], s29 offen" % ar(8 * kb + 4 * rt, 4), ("st", s))
    for s in range(5): stage(s)
    frs = [(s, ks, a, uu) for s in range(10) for ks in range(2) for uu in range(7) for a in range(2)]
    def read(i):
        s, ks, a, uu = frs[i]
        if ks == 0 and uu == 0 and a == 0:
            k.wait(vm=[("st", s)])
            k("s_barrier")
            if s >= 2 and s + 3 < 10: stage(s + 3)
        slot = s % 5
        base, off = (5, 6, 6, 7, 7)[slot] if False else [5, 5, 6, 6, 7][slot], (slot % 2) * G1_STAGE
        for t in range(2):
            k.lds("ds_read_b64_tr_b16 %s, v%d offset:%d" % (vr(FB + 4 * (i % NB) + 2 * t, 2), base, off + a * 14336 + (32 * ks + 16 * t) * 224 + 32 * uu), ("f", i))
    for i in range(LA): read(i)
    for i, (s, ks, a, uu) in enumerate(frs):
        if i + LA < len(frs): read(i + LA)
        k.wait(lg=[("f", i)])
        kb = 2 * s + ks
        for rt in range(2):
            d = ACC + 4 * (rt * 14 + a * 7 + uu)
            k("v_mfma_f32_16x16x32_bf16 %s, %s, %s, %s" % (vr(d, 4), vr(FB + 4 * (i % NB), 4), ar(8 * kb + 4 * rt, 4), "0" if kb == 0 else vr(d, 4)))
    T = FB
    for rt in range(2):
        for uu in range(7):
            g, u = ACC + 4 * (rt * 14 + uu), ACC + 4 * (rt * 14 + 7 + uu)
            rndn(k, [g, g + 2, u, u + 2], [T, T + 1, T + 2, T + 3], OPT["RG"])
            k("v_pk_mul_f32 %s, %s, %s\nv_pk_mul_f32 %s, %s, %s" % (vr(g, 2), vr(g, 2), vr(u, 2), vr(g + 2, 2), vr(g + 2, 2), vr(u + 2, 2)))
            k("v_cvt_pk_bf16_f32 v%d, v%d, v%d\nv_cvt_pk_bf16_f32 v%d, v%d, v%d" % (u, g, g + 1, u + 1, g + 2, g + 3))
            k("s_add_u32 s29, s23, %d\ns_and_b32 s30, s29, 1\ns_lshr_b32 s29, s29, 1\ns_lshl_b32 s29, s29, 10\ns_lshl_b32 s30, s30, 3\ns_add_u32 s29, s29, s30" % uu)
            if rt: k("s_add_u32 s29, s29, 55296")
            k.vmem("buffer_store_dwordx2 %s, v4, s[36:39], s29 offen" % vr(u, 2))
    k(end + ":\ns_endpgm")
    return ("gemm1_kernel", k.text(), 256 + 160, 256, 102), 5 * G1_STAGE

G2_STAGE = 20480
def k_gemm2():
    k = K("g2")
    end = "Lend_g2"
    k("s_cmp_ge_u32 s2, 256\ns_cbranch_scc1 %s" % end)
    ldptr(k, 6, A_OUT); ldptr(k, 10, A_WS)
    k("s_mov_b32 %s, 0xffff0000" % MASK)
    wave_id(k, 21, 1)
    k("""
    s_and_b32 s20, s2, 7
    s_lshr_b32 s22, s2, 3
    s_lshr_b32 s23, s22, 2
    s_and_b32 s24, s21, 1
    s_lshr_b32 s25, s21, 1
    s_lshl_b32 s26, s20, 4
    s_and_b32 s27, s22, 3
    s_lshl_b32 s27, s27, 2
    s_add_u32 s26, s26, s27
    s_lshl_b32 s27, s24, 1
    s_add_u32 s26, s26, s27
    s_add_u32 s27, s26, s25
    s_xor_b32 s28, s25, 1
    s_add_u32 s28, s26, s28
    v_and_b32 v1, 63, v0
    v_lshlrev_b32 v2, 4, v1
    s_mul_i32 s30, s25, 27648
    s_mul_i32 s29, s27, 55296
    s_add_u32 s29, s29, s30
    v_add_u32 v3, s29, v2
    s_mul_i32 s29, s28, 55296
    s_add_u32 s29, s29, s30
    v_add_u32 v4, s29, v2
    s_mul_i32 s29, s23, 54
    s_mul_i32 s30, s24, 27
    s_add_u32 s29, s29, s30
    s_add_u32 s29, s29, s25
    s_mul_i32 s29, s29, 5120
    v_add_u32 v5, s29, v2
    s_mul_i32 s31, s21, 5120
    s_mul_i32 s29, s25, 5120
    v_add_u32 v6, s29, v2
    v_add_u32 v7, %d, v6
    v_add_u32 v8, %d, v6
    v_and_b32 v9, 15, v1
    s_lshl_b32 s29, s27, 4
    v_add_u32 v9, s29, v9
    v_mul_u32_u24 v9, 1280, v9
    s_mul_i32 s29, s23, 160
    v_add_u32 v9, s29, v9
    v_lshrrev_b32 v11, 4, v1
    v_lshl_add_u32 v10, v11, 3, v9
    v_lshl_add_u32 v9, v11, 4, v9
    s_mul_i32 s29, s23, 320
    s_add_u32 s29, s29, %d
    v_lshlrev_b32 v12, 4, v11
    v_add_u32 v12, s29, v12
    v_lshlrev_b32 v11, 5, v11
    v_add_u32 v11, s29, v11
    v_add_u32 v13, s31, v2
    v_add_u32 v13, %d, v13
    s_xor_b32 s29, s21, 2
    s_mul_i32 s29, s29, 5120
    v_add_u32 v14, s29, v2
    v_add_u32 v14, %d, v14
    s_waitcnt lgkmcnt(0)
    """ % (3 * G2_STAGE, 6 * G2_STAGE, 5 * 2560, 7 * G2_STAGE, 7 * G2_STAGE))
    srd(k, 12, 10, SZ_W + 10240, WS_WDF); srd(k, 16, 10, SZ_HH, WS_HH); srd(k, 32, 10, 6 * D * 4, WS_MOD)
    srd(k, 36, 6, SZ_SD); srd(k, 40, 10, SZ_SD, WS_X1)
    ACC, FB, NB, LA, X1, GB = 16, 56, 6, 5, 80, 92
    def stage(s):
        k("s_mul_i32 s29, %d, 1\ns_add_u32 m0, s31, %d" % (s * 10240, (s % 7) * G2_STAGE))
        for n in range(4):
            k.vmem("buffer_load_dwordx4 v5, s[12:15], s29 offen offset:%d lds" % (n * 1024), ("st", s))
        k("s_add_u32 s29, s29, 4096\ns_add_u32 m0, s31, %d" % ((s % 7) * G2_STAGE + 4096))
        k.vmem("buffer_load_dwordx4 v5, s[12:15], s29 offen lds", ("st", s))
        for par in range(2):
            st = 2 * s + par
            if st < 27:
                k("s_mov_b32 s29, %d" % (st * 1024))
                k.vmem("buffer_load_dwordx4 %s, v3, s[16:19], s29 offen" % ar(8 * st, 4), ("st", s))
                k.vmem("buffer_load_dwordx4 %s, v4, s[16:19], s29 offen" % ar(8 * st + 4, 4), ("st", s))
    for s in range(6): stage(s)
    frs = [(st, ct) for st in range(27) for ct in range(5)]
    def read(i):
        st, ct = frs[i]
        s, par = st // 2, st % 2
        if par == 0 and ct == 0:
            k.wait(vm=[("st", s)])
            k("s_barrier")
            if s >= 1 and s + 5 < 14: stage(s + 5)
            if s == 10:
                k.vmem("buffer_load_dwordx4 %s, v9, s[40:43], 0 offen" % vr(X1, 4), "ep")
                k.vmem("buffer_load_dwordx4 %s, v9, s[40:43], 0 offen offset:64" % vr(X1 + 4, 4), "ep")
                k.vmem("buffer_load_dwordx2 %s, v10, s[40:43], 0 offen offset:128" % vr(X1 + 8, 2), "ep")
                for j in range(4):
                    k.vmem("buffer_load_dwordx4 %s, v11, s[32:35], 0 offen offset:%d" % (vr(GB + 4 * j, 4), 128 * (j >> 1) + 16 * (j & 1)), "ep")
                k.vmem("buffer_load_dwordx4 %s, v12, s[32:35], 0 offen offset:256" % vr(GB + 16, 4), "ep")
        slot = s % 7
        base, off = [6, 6, 6, 7, 7, 7, 8][slot], (slot % 3) * G2_STAGE
        k.lds("ds_read_b128 %s, v%d offset:%d" % (vr(FB + 4 * (i % NB), 4), base, off + par * 10240 + ct * 1024), ("f", i))
    for i in range(LA): read(i)
    for i, (st, ct) in enumerate(frs):
        if i + LA < len(frs): read(i + LA)
        k.wait(lg=[("f", i)])
        for rt in range(2):
            d = ACC + 4 * (rt * 5 + ct)
            k("v_mfma_f32_16x16x32_bf16 %s, %s, %s, %s" % (vr(d, 4), vr(FB + 4 * (i % NB), 4), ar(8 * st + 4 * rt, 4), "0" if st == 0 else vr(d, 4)))
    for ct in range(5):
        k.lds("ds_write_b128 v13, %s offset:%d" % (vr(ACC + 20 + 4 * ct, 4), 1024 * ct))
    k.wait_all(vm=False)
    k("s_barrier")
    for ct in range(5):
        k.lds("ds_read_b128 %s, v14 offset:%d" % (vr(ACC + 20 + 4 * ct, 4), 1024 * ct), ct)
    k.wait(vm="ep")
    XF = 112
    for i in range(10): unpack(k, XF + 2 * i, XF + 2 * i + 1, X1 + i)
    T = FB
    for ct in range(5):
        k.wait(lg=[ct])
        a = ACC + 4 * ct
        k("v_pk_add_f32 %s, %s, %s\nv_pk_add_f32 %s, %s, %s" % (vr(a, 2), vr(a, 2), vr(a + 20, 2), vr(a + 2, 2), vr(a + 2, 2), vr(a + 22, 2)))
    prs = [ACC + 2 * i for i in range(10)]
    tm = [T, T + 1, T + 2, T + 3, T + 4]
    rndn(k, prs, tm, OPT["RG"])
    if OPT["RG"]:
        for i in range(10): k("v_pk_mul_f32 %s, %s, %s" % (vr(ACC + 2 * i, 2), vr(ACC + 2 * i, 2), vr(GB + 2 * i, 2)))
        rndn(k, prs, tm)
        for i in range(10): k("v_pk_add_f32 %s, %s, %s" % (vr(ACC + 2 * i, 2), vr(ACC + 2 * i, 2), vr(XF + 2 * i, 2)))
    else:
        for i in range(10): k("v_pk_fma_f32 %s, %s, %s, %s" % (vr(ACC + 2 * i, 2), vr(ACC + 2 * i, 2), vr(GB + 2 * i, 2), vr(XF + 2 * i, 2)))
    for i in range(10): k("v_cvt_pk_bf16_f32 v%d, v%d, v%d" % (X1 + i, ACC + 2 * i, ACC + 2 * i + 1))
    k.vmem("buffer_store_dwordx4 %s, v9, s[36:39], 0 offen" % vr(X1, 4))
    k.vmem("buffer_store_dwordx4 %s, v9, s[36:39], 0 offen offset:64" % vr(X1 + 4, 4))
    k.vmem("buffer_store_dwordx2 %s, v10, s[36:39], 0 offen offset:128" % vr(X1 + 8, 2))
    k(end + ":\ns_endpgm")
    return ("gemm2_kernel", k.text(), 256 + 216, 256, 102), 8 * G2_STAGE

if __name__ == "__main__":
    assert all((cb * 101 * 4370) >> 16 == cb * 101 // 15 for cb in range(16))
    assert all((x * 4682) >> 16 == x // 14 for x in range(448))
    assert all((x * 205) >> 11 == x // 10 for x in range(60))
    kp = k_prep(); kc, lc = k_conv(); kl, ll = k_ln(); k1, l1 = k_gemm1(); k2, l2 = k_gemm2()
    launches = [("prep_kernel", 370, 256, 40960), ("conv_kernel", 256, 256, lc), ("ln_kernel", 256, 256, ll),
                ("gemm1_kernel", 256, 256, l1), ("gemm2_kernel", 256, 256, l2)]
    out = OPT.get("out", "base.s")
    open(out, "w").write(build(launches, [kp, kc, kl, k1, k2]))
    print("wrote", out)
```

```python
import sys, struct
from asmlib import *

S, D, F = 2048, 640, 1728
A_Q, A_K, A_V, A_SK, A_SSMK, A_SSMD, A_WG, A_WU, A_WD, A_C, A_WM, A_OUT, A_DBG, A_WS = 0, 8, 16, 24, 32, 40, 56, 64, 72, 80, 88, 96, 104, 112
WS_KVT, WS_YY, WS_H2F, WS_X1, WS_HH, WS_WDF, WS_MOD = 0, 0x300000, 0x600000, 0x900000, 0xC00000, 0x1300000, 0x1600000
SZ_SD = S * D * 2
SZ_HH = S * F * 2
SZ_W = D * F * 2
OPT = dict(RK=1, RY=1, RL=1, RG=1)
for a in sys.argv[1:]:
    if "=" in a:
        x, y = a.split("="); OPT[x] = int(y) if y.lstrip("-").isdigit() else y
MASK = "s99"

def f32bits(x):
    return "0x%08x" % struct.unpack("<I", struct.pack("<f", x))[0]

def ldptr(k, s, off):
    k("s_load_dwordx2 %s, s[0:1], %d" % (sr(s, 2), off))
def srd(k, d, p, nbytes, off=0):
    if off:
        k("s_add_u32 s%d, s%d, 0x%x\ns_addc_u32 s%d, s%d, 0" % (d, p, off, d + 1, p + 1))
        k("s_and_b32 s%d, s%d, 0xffff" % (d + 1, d + 1))
    else:
        k("s_mov_b32 s%d, s%d\ns_and_b32 s%d, s%d, 0xffff" % (d, p, d + 1, p + 1))
    k("s_mov_b32 s%d, 0x%x\ns_mov_b32 s%d, 0x20000" % (d + 2, nbytes, d + 3))
def unpack(k, lo, hi, src):
    k("v_lshlrev_b32 v%d, 16, v%d\nv_and_b32 v%d, %s, v%d" % (lo, src, hi, MASK, src))
def rnd2(k, a, tmp, on=1):
    if on:
        k("v_cvt_pk_bf16_f32 v%d, v%d, v%d" % (tmp, a, a + 1))
        unpack(k, a, a + 1, tmp)
def rndn(k, regs, tmps, on=1):
    if not on: return
    for i in range(0, len(regs), len(tmps)):
        grp = regs[i:i + len(tmps)]
        for a, t in zip(grp, tmps): k("v_cvt_pk_bf16_f32 v%d, v%d, v%d" % (t, a, a + 1))
        for a, t in zip(grp, tmps): unpack(k, a, a + 1, t)
def rnd1(k, a):
    k("v_cvt_pk_bf16_f32 v%d, v%d, v%d\nv_lshlrev_b32 v%d, 16, v%d" % (a, a, a, a, a))
def wave_id(k, s, vt):
    k("v_lshrrev_b32 v%d, 6, v0\nv_readfirstlane_b32 s%d, v%d" % (vt, s, vt))

def p1a(k, end):
    ldptr(k, 4, A_K); ldptr(k, 6, A_V); ldptr(k, 8, A_SK); ldptr(k, 10, A_WS)
    k("s_and_b32 s20, s2, 7\ns_lshr_b32 s21, s2, 3\ns_mov_b32 %s, 0xffff0000" % MASK)
    k("v_cmp_gt_u32 vcc, 160, v0\ns_and_saveexec_b64 s[30:31], vcc\ns_cbranch_execz %s" % end)
    k("""
    v_lshrrev_b32 v1, 3, v0
    v_and_b32 v2, 7, v0
    v_lshlrev_b32 v2, 3, v2
    s_lshl_b32 s22, s21, 6
    v_add_u32 v2, s22, v2
    s_mul_i32 s23, s20, 80
    v_lshlrev_b32 v1, 2, v1
    v_add_u32 v1, s23, v1
    v_mul_u32_u24 v3, 1280, v2
    v_lshl_add_u32 v3, v1, 1, v3
    v_subrev_u32 v4, 3840, v3
    v_cmp_eq_u32 vcc, 0, v2
    v_mov_b32 v5, 0x7ff00000
    v_cndmask_b32 v4, v4, v5, vcc
    v_lshlrev_b32 v5, 3, v1
    v_lshlrev_b32 v6, 12, v1
    v_lshl_add_u32 v6, v2, 1, v6
    s_movk_i32 s24, 3840
    s_movk_i32 s25, 7680
    s_movk_i32 s26, 4096
    s_movk_i32 s27, 8192
    s_movk_i32 s28, 12288
    s_waitcnt lgkmcnt(0)
    """)
    srd(k, 12, 4, SZ_SD); srd(k, 16, 6, SZ_SD); srd(k, 32, 8, D * 8); srd(k, 36, 10, SZ_SD, WS_KVT)
    KR, VR, SR_, SF, KF, VF, OUT, T = 8, 30, 46, 56, 72, 116, 148, 180
    k.vmem("buffer_load_dwordx4 %s, v5, s[32:35], 0 offen" % vr(SR_, 4), "sk")
    k.vmem("buffer_load_dwordx4 %s, v5, s[32:35], 0 offen offset:16" % vr(SR_ + 4, 4), "sk")
    so = ["0", "s24", "s25"]
    for r in range(3):
        k.vmem("buffer_load_dwordx2 %s, v4, s[12:15], 0 offen offset:%d" % (vr(KR + 2 * r, 2), 1280 * r), "k")
    for r in range(8):
        k.vmem("buffer_load_dwordx2 %s, v3, s[12:15], %s offen offset:%d" % (vr(KR + 6 + 2 * r, 2), so[r // 3], 1280 * (r % 3)), "k")
    for r in range(8):
        k.vmem("buffer_load_dwordx2 %s, v3, s[16:19], %s offen offset:%d" % (vr(VR + 2 * r, 2), so[r // 3], 1280 * (r % 3)), "v")
    k.wait(vm="sk")
    for c in range(4):
        unpack(k, SF + 0 + c, SF + 4 + c, SR_ + 2 * c)
        unpack(k, SF + 8 + c, SF + 12 + c, SR_ + 2 * c + 1)
    k.wait(vm="k")
    for r in range(11):
        unpack(k, KF + 4 * r, KF + 4 * r + 1, KR + 2 * r); unpack(k, KF + 4 * r + 2, KF + 4 * r + 3, KR + 2 * r + 1)
    P, TM = T, T + 8
    for i0 in range(0, 8, 2):
        items = [(i, p) for i in (i0, i0 + 1) for p in (0, 1)]
        acc = [OUT + 4 * i + 2 * p for i, p in items]
        prod = [P + 2 * n for n in range(4)]
        tm = [TM + n for n in range(4)]
        for a, (i, p) in zip(acc, items):
            k("v_pk_mul_f32 %s, %s, %s" % (vr(a, 2), vr(KF + 4 * i + 2 * p, 2), vr(SF + 12 + 2 * p, 2)))
        rndn(k, acc, tm, OPT["RK"])
        for j in (2, 1, 0):
            if OPT["RK"]:
                for t, (i, p) in zip(prod, items):
                    k("v_pk_mul_f32 %s, %s, %s" % (vr(t, 2), vr(KF + 4 * (i + 3 - j) + 2 * p, 2), vr(SF + 4 * j + 2 * p, 2)))
                rndn(k, prod, tm)
                for a, t in zip(acc, prod):
                    k("v_pk_add_f32 %s, %s, %s" % (vr(a, 2), vr(a, 2), vr(t, 2)))
                rndn(k, acc, tm)
            else:
                for a, (i, p) in zip(acc, items):
                    k("v_pk_fma_f32 %s, %s, %s, %s" % (vr(a, 2), vr(KF + 4 * (i + 3 - j) + 2 * p, 2), vr(SF + 4 * j + 2 * p, 2), vr(a, 2)))
    k.wait(vm="v")
    for r in range(8):
        unpack(k, VF + 4 * r, VF + 4 * r + 1, VR + 2 * r); unpack(k, VF + 4 * r + 2, VF + 4 * r + 3, VR + 2 * r + 1)
    for r in range(16):
        k("v_pk_mul_f32 %s, %s, %s" % (vr(OUT + 2 * r, 2), vr(OUT + 2 * r, 2), vr(VF + 2 * r, 2)))
    so = ["0", "s26", "s27", "s28"]
    for c in range(4):
        for jj in range(4):
            k("v_cvt_pk_bf16_f32 v%d, v%d, v%d" % (KF + 4 * c + jj, OUT + 4 * (7 - 2 * jj) + c, OUT + 4 * (6 - 2 * jj) + c))
        k.vmem("buffer_store_dwordx4 %s, v6, s[36:39], %s offen" % (vr(KF + 4 * c, 4), so[c]))
    k("s_branch %s" % end)

def modrole(k, end, sid):
    ldptr(k, 4, A_C); ldptr(k, 6, A_WM); ldptr(k, 10, A_WS)
    k("s_mov_b32 %s, 0xffff0000" % MASK)
    wave_id(k, 21, 1)
    k("""
    v_and_b32 v1, 7, v0
    v_lshrrev_b32 v2, 3, v0
    v_mul_u32_u24 v3, 0x25800, v2
    v_lshl_add_u32 v3, v1, 4, v3
    s_lshl_b32 s22, s%d, 7
    v_add_u32 v3, s22, v3
    v_lshlrev_b32 v4, 3, v0
    s_waitcnt lgkmcnt(0)
    """ % sid)
    srd(k, 12, 4, D * 2); srd(k, 16, 6, D * 3840 * 2); srd(k, 36, 10, 6 * D * 4, WS_MOD)
    W, SV, ACC, T = 16, 96, 116, 124
    k.vmem("buffer_load_dwordx2 v[8:9], v4, s[12:15], 0 offen", "c")
    for i in range(20):
        k("s_mov_b32 s23, %d" % (i * 7680))
        k.vmem("buffer_load_dwordx4 %s, v3, s[16:19], s23 offen" % vr(W + 4 * i, 4), "w%d" % i)
    k.wait(vm="c")
    unpack(k, 10, 11, 8); unpack(k, 12, 13, 9)
    for i in range(4):
        k("v_mul_f32 v%d, %s, v%d" % (T + i, f32bits(-1.4426950408889634), 10 + i))
    for i in range(4): k("v_exp_f32 v%d, v%d" % (T + i, T + i))
    for i in range(4): k("v_add_f32 v%d, 1.0, v%d" % (T + i, T + i))
    for i in range(4): k("v_rcp_f32 v%d, v%d" % (T + i, T + i))
    for i in range(4): k("v_mul_f32 v%d, v%d, v%d" % (T + i, T + i, 10 + i))
    rndn(k, [T, T + 2], [8, 9])
    k("v_lshlrev_b32 v4, 4, v0")
    k.lds("ds_write_b128 v4, %s" % vr(T, 4))
    k.wait_all(vm=False)
    k("s_barrier\nv_mul_u32_u24 v4, 80, v2")
    for i in range(5):
        k.lds("ds_read_b128 %s, v4 offset:%d" % (vr(SV + 4 * i, 4), 16 * i))
    k.wait_all(vm=False)
    for i in range(20):
        k.wait(vm="w%d" % i)
        for c in range(4):
            unpack(k, T + 2 * c, T + 2 * c + 1, W + 4 * i + c)
        sv = SV + i
        sel = "op_sel:[0,1] op_sel_hi:[1,1]" if sv & 1 else "op_sel_hi:[1,0]"
        for c in range(4):
            if i == 0:
                k("v_pk_mul_f32 %s, %s, %s %s" % (vr(ACC + 2 * c, 2), vr(T + 2 * c, 2), vr(sv & ~1, 2), sel))
            else:
                k("v_pk_fma_f32 %s, %s, %s, %s %s" % (vr(ACC + 2 * c, 2), vr(T + 2 * c, 2), vr(sv & ~1, 2), vr(ACC + 2 * c, 2),
                  "op_sel:[0,1,0] op_sel_hi:[1,1,1]" if sv & 1 else "op_sel_hi:[1,0,1]"))
    k("v_lshlrev_b32 v4, 5, v0")
    k.lds("ds_write_b128 v4, %s offset:4096" % vr(ACC, 4))
    k.lds("ds_write_b128 v4, %s offset:4112" % vr(ACC + 4, 4))
    k.wait_all(vm=False)
    k("s_barrier\ns_cmp_lg_u32 s21, 0\ns_cbranch_scc1 %s" % end)
    k("v_lshlrev_b32 v4, 2, v0")
    for i in range(32):
        k.lds("ds_read_b32 v%d, v4 offset:%d" % (W + i, 4096 + 256 * i))
        if i == 14: k.wait_all(vm=False)
    k.wait_all(vm=False)
    for st in (16, 8, 4, 2, 1):
        for i in range(st):
            k("v_add_f32 v%d, v%d, v%d" % (W + i, W + i, W + i + st))
    rnd1(k, W)
    k("v_add_f32 v%d, 1.0, v%d" % (W + 1, W))
    rnd1(k, W + 1)
    k("""
    s_mul_i32 s23, s%d, 205
    s_lshr_b32 s23, s23, 11
    s_cmp_eq_u32 s23, 1
    s_cselect_b32 s24, 1, 0
    s_cmp_eq_u32 s23, 4
    s_cselect_b32 s24, 1, s24
    s_cmp_eq_u32 s24, 1
    s_cselect_b64 vcc, -1, 0
    v_cndmask_b32 v%d, v%d, v%d, vcc
    s_lshl_b32 s22, s%d, 8
    """ % (sid, W, W, W + 1, sid))
    k.vmem("buffer_store_dword v%d, v4, s[36:39], s22 offen" % W)
    k("s_branch %s" % end)

def wdrole(k, end, sid):
    ldptr(k, 4, A_WD); ldptr(k, 10, A_WS)
    wave_id(k, 21, 1)
    k("""
    v_and_b32 v1, 63, v0
    v_lshlrev_b32 v2, 4, v1
    s_mul_i32 s22, s21, 10240
    v_add_u32 v3, s22, v2
    s_mul_i32 s23, s%d, 40960
    v_lshrrev_b32 v4, 2, v1
    v_and_b32 v5, 3, v1
    v_mul_u32_u24 v4, 1280, v4
    s_mul_i32 s24, s21, 320
    v_add_u32 v4, s24, v4
    v_lshl_add_u32 v6, v5, 4, v4
    v_lshl_add_u32 v7, v5, 3, v4
    s_waitcnt lgkmcnt(0)
    """ % sid)
    srd(k, 12, 4, SZ_W); srd(k, 36, 10, SZ_W, WS_WDF)
    for n in range(10):
        if n % 4 == 0:
            k("s_add_u32 m0, s22, %d\ns_add_u32 s25, s23, %d" % ((n // 4) * 4096, (n // 4) * 4096))
        k.vmem("buffer_load_dwordx4 v3, s[12:15], s25 offen offset:%d lds" % ((n % 4) * 1024))
    k.wait_all(lg=False)
    k("s_barrier")
    for cc in range(2):
        for ct in range(5):
            b = 8 + 4 * (5 * cc + ct)
            for t in range(2):
                if ct < 4:
                    k.lds("ds_read_b64_tr_b16 %s, v6 offset:%d" % (vr(b + 2 * t, 2), t * 20480 + cc * 160 + (ct >> 1) * 64 + (ct & 1) * 8), (cc, ct))
                else:
                    k.lds("ds_read_b64_tr_b16 %s, v7 offset:%d" % (vr(b + 2 * t, 2), t * 20480 + cc * 160 + 128), (cc, ct))
        k("s_lshl_b32 s25, s21, 1\ns_add_u32 s25, s25, %d\ns_mul_i32 s25, s25, 54\ns_add_u32 s25, s25, s%d\ns_mul_i32 s25, s25, 5120" % (cc, sid))
        for ct in range(5):
            b = 8 + 4 * (5 * cc + ct)
            k.wait(lg=[(cc, ct)])
            if ct == 4: k("s_add_u32 s25, s25, 4096")
            k.vmem("buffer_store_dwordx4 %s, v2, s[36:39], s25 offen offset:%d" % (vr(b, 4), (ct % 4) * 1024))
    k("s_branch %s" % end)

def k_prep():
    k = K("prep")
    end = "Lend_prep"
    l1, l2 = k.label(), k.label()
    k("s_cmp_ge_u32 s2, 370\ns_cbranch_scc1 %s" % end)
    k("s_cmp_ge_u32 s2, 316\ns_cbranch_scc1 %s" % l2)
    k("s_cmp_ge_u32 s2, 256\ns_cbranch_scc1 %s" % l1)
    p1a(k, end)
    k(l1 + ":"); k.vm = []; k.lg = []
    k("s_sub_u32 s40, s2, 256")
    modrole(k, end, 40)
    k(l2 + ":"); k.vm = []; k.lg = []
    k("s_sub_u32 s40, s2, 316")
    wdrole(k, end, 40)
    k(end + ":\ns_endpgm")
    return ("prep_kernel", k.text(), 192, None, 102)

KCOPY = 4160
CW = 4 * KCOPY + 4608
CSTAGE = 4 * CW
def k_conv():
    k = K("conv")
    end = "Lend_conv"
    k("s_cmp_ge_u32 s2, 256\ns_cbranch_scc1 %s" % end)
    k("s_and_b32 s20, s2, 7\ns_lshr_b32 s22, s2, 3\ns_cmp_ge_u32 s22, 20\ns_cbranch_scc1 %s" % end)
    ldptr(k, 4, A_SSMK); ldptr(k, 6, A_SSMD); ldptr(k, 10, A_WS)
    k("s_mov_b32 %s, 0xffff0000" % MASK)
    wave_id(k, 21, 1)
    k("""
    s_mul_i32 s23, s20, 80
    s_lshl_b32 s24, s22, 2
    s_add_u32 s23, s23, s24
    s_add_u32 s24, s23, s21
    s_mul_i32 s25, s21, %d
    s_lshl_b32 s26, s24, 12
    v_and_b32 v1, 63, v0
    v_lshlrev_b32 v2, 4, v1
    v_add_u32 v2, s26, v2
    v_and_b32 v3, 15, v1
    v_lshrrev_b32 v4, 4, v1
    v_add_u32 v5, v3, v4
    v_subrev_u32 v5, 16, v5
    v_cmp_gt_i32 vcc, 0, v5
    v_lshlrev_b32 v5, 1, v5
    v_add_u32 v5, s26, v5
    v_mov_b32 v6, 0x7ff00000
    v_cndmask_b32 v5, v5, v6, vcc
    v_mul_u32_u24 v6, %d, v4
    v_lshl_add_u32 v6, v3, 1, v6
    v_add_u32 v6, s25, v6
    s_lshr_b32 s27, s24, 1
    s_lshl_b32 s27, s27, 2
    s_waitcnt lgkmcnt(0)
    s_load_dword s28, s[6:7], s27
    """ % (CW, KCOPY))
    srd(k, 12, 4, D * S * 2); srd(k, 16, 10, SZ_SD, WS_KVT); srd(k, 36, 10, SZ_SD, WS_YY)
    k.vmem("buffer_load_ushort v7, v5, s[12:15], 0 offen", "patch")
    k("s_add_u32 m0, s25, %d" % (4 * KCOPY + 512))
    for n in range(4):
        k.vmem("buffer_load_dwordx4 v2, s[16:19], 0 offen offset:%d lds" % (n * 1024))
    for c in range(4):
        k("s_add_u32 m0, s25, %d" % (c * KCOPY + 32))
        for n in range(4):
            k.vmem("buffer_load_dwordx4 v2, s[12:15], %d offen offset:%d lds" % (2 * c, n * 1024))
    k("""
    v_mov_b32 v8, 0
    v_mov_b32 v9, 0
    v_lshlrev_b32 v10, 3, v1
    v_add_u32 v10, s25, v10
    ds_write_b64 v10, v[8:9] offset:%d
    v_add_u32 v11, 1, v3
    v_and_b32 v12, 3, v11
    v_lshrrev_b32 v11, 2, v11
    v_mul_u32_u24 v12, %d, v12
    v_lshlrev_b32 v13, 1, v4
    v_sub_u32 v11, v11, v13
    v_add_u32 v11, 2, v11
    v_lshl_add_u32 v12, v11, 3, v12
    v_add_u32 v12, 32, v12
    v_add_u32 v12, s25, v12
    v_lshl_add_u32 v13, v3, 1, v4
    v_lshlrev_b32 v13, 4, v13
    s_add_u32 s29, s25, %d
    v_add_u32 v13, s29, v13
    """ % (4 * KCOPY, KCOPY, 4 * KCOPY + 480))
    VF_, VX = 12, 13
    k.wait(vm="patch")
    k("ds_write_b16 v6, v7")
    k("""
    v_lshrrev_b32 v14, 1, v4
    v_lshl_add_u32 v14, v3, 1, v14
    v_lshlrev_b32 v14, 4, v14
    v_and_b32 v15, 1, v4
    v_xor_b32 v15, 1, v15
    v_lshl_add_u32 v14, v15, 3, v14
    s_add_u32 s29, s25, %d
    v_add_u32 v14, s29, v14
    """ % (4 * KCOPY + 512))
    k.wait_all()
    ACC, FB, XB = 16, 48, 80
    def ldF(a):
        k.lds("ds_read_b64 %s, v%d offset:%d" % (vr(FB + 4 * a, 2), VF_, 512 * a), ("F", a))
        k.lds("ds_read_b64 %s, v%d offset:%d" % (vr(FB + 4 * a + 2, 2), VF_, 512 * a + 8), ("F", a))
    def ldX(b):
        k.lds("ds_read_b128 %s, v%d offset:%d" % (vr(XB + 4 * b, 4), VX, 512 * b), ("X", b))
    for i in range(32): k("v_mov_b32 v%d, 0" % (ACC + i))
    for a in range(8):
        ldX(7 - a); ldF(a)
    k("v_add_u32 v%d, 64, v%d\nv_subrev_u32 v%d, 64, v%d\ns_mov_b32 s30, 0" % (VF_, VF_, VX, VX))
    def body():
        for a in range(8):
            for b in range(7 - a, -1, -1):
                k.wait(lg=[("F", a), ("X", b)])
                u = a + b
                k("v_mfma_f32_16x16x32_bf16 %s, %s, %s, %s" % (vr(ACC + 4 * u, 4), vr(FB + 4 * a, 4), vr(XB + 4 * b, 4), vr(ACC + 4 * u, 4)))
                if b == 7 - a: ldX(b)
            ldF(a)
        k("v_add_u32 v%d, 64, v%d\nv_subrev_u32 v%d, 64, v%d" % (VF_, VF_, VX, VX))
    state0 = list(k.lg)
    lp = k.label()
    k(lp + ":")
    body()
    assert k.lg == state0[len(state0) - len(k.lg):], (k.lg, state0)
    k("s_add_u32 s30, s30, 1\ns_cmp_lt_u32 s30, 8\ns_cbranch_scc1 %s" % lp)
    k.wait_all(vm=False)
    KV = FB
    for u in range(8):
        k.lds("ds_read_b64 %s, v14 offset:%d" % (vr(KV + 2 * u, 2), 512 * u), ("kv", u))
    k("""
    s_and_b32 s27, s24, 1
    s_lshl_b32 s27, s27, 4
    s_lshr_b32 s28, s28, s27
    s_lshl_b32 s28, s28, 16
    v_mov_b32 v8, s28
    v_mov_b32 v9, s28
    v_and_b32 v10, 14, v3
    s_lshl_b32 s27, s21, 2
    v_add_u32 v11, s27, v4
    v_xor_b32 v10, v10, v11
    v_lshlrev_b32 v10, 3, v10
    v_lshl_add_u32 v10, v3, 7, v10
    v_add_u32 v10, %d, v10
    """ % CSTAGE)
    T = XB
    for u in range(8):
        k.wait(lg=[("kv", u)])
        a = ACC + 4 * u
        unpack(k, T + 3, T + 2, KV + 2 * u); unpack(k, T + 1, T + 0, KV + 2 * u + 1)
        if OPT["RY"]:
            k("v_pk_mul_f32 %s, %s, v[8:9]\nv_pk_mul_f32 %s, %s, v[8:9]" % (vr(T, 2), vr(T, 2), vr(T + 2, 2), vr(T + 2, 2)))
            rndn(k, [T, T + 2, a, a + 2], [T + 4, T + 5, T + 6, T + 7])
            k("v_pk_add_f32 %s, %s, %s\nv_pk_add_f32 %s, %s, %s" % (vr(a, 2), vr(a, 2), vr(T, 2), vr(a + 2, 2), vr(a + 2, 2), vr(T + 2, 2)))
        else:
            k("v_pk_fma_f32 %s, %s, v[8:9], %s\nv_pk_fma_f32 %s, %s, v[8:9], %s" % (vr(a, 2), vr(T, 2), vr(a, 2), vr(a + 2, 2), vr(T + 2, 2), vr(a + 2, 2)))
        o = T + 8 + 2 * (u & 1)
        k("v_cvt_pk_bf16_f32 v%d, v%d, v%d\nv_cvt_pk_bf16_f32 v%d, v%d, v%d" % (o, a, a + 1, o + 1, a + 2, a + 3))
        k.lds("ds_write_b64 v10, %s offset:%d" % (vr(o, 2), 2048 * u))
    k.wait_all(vm=False)
    k("s_barrier")
    k("""
    v_lshrrev_b32 v1, 3, v0
    v_and_b32 v2, 7, v0
    v_and_b32 v3, 14, v1
    v_lshlrev_b32 v4, 1, v2
    v_xor_b32 v4, v4, v3
    v_lshlrev_b32 v4, 3, v4
    v_lshl_add_u32 v4, v1, 7, v4
    v_add_u32 v4, %d, v4
    v_mul_u32_u24 v5, 20480, v1
    v_lshl_add_u32 v5, v2, 4, v5
    s_lshl_b32 s27, s23, 5
    v_add_u32 v5, s27, v5
    """ % CSTAGE)
    for i in range(4):
        k.lds("ds_read_b128 %s, v4 offset:%d" % (vr(16 + 4 * i, 4), 4096 * i), i)
    for i in range(4):
        k.wait(lg=[i])
        k("s_mov_b32 s27, %d" % (32 * 20480 * i))
        k.vmem("buffer_store_dwordx4 %s, v5, s[36:39], s27 offen" % vr(16 + 4 * i, 4))
    k(end + ":\ns_endpgm")
    return ("conv_kernel", k.text(), 128, None, 102), CSTAGE + 16384

def reduce_rows(k, v, t, region, vaddr_w, vaddr_r):
    k("v_add_f32 v%d, v%d, v%d row_ror:8 row_mask:0xf bank_mask:0xf" % (v, v, v))
    k("v_mov_b32 v%d, v%d\nv_permlane16_swap_b32 v%d, v%d\nv_add_f32 v%d, v%d, v%d" % (t, v, v, t, v, v, t))
    k("v_mov_b32 v%d, v%d\nv_permlane32_swap_b32 v%d, v%d\nv_add_f32 v%d, v%d, v%d" % (t, v, v, t, v, v, t))
    k.lds("ds_write_b32 v%d, v%d offset:%d" % (vaddr_w, v, region))
    k.wait_all(vm=False)
    k("s_barrier")
    k.lds("ds_read_b128 %s, v%d offset:%d" % (vr(t, 4), vaddr_r, region))
    k.wait_all(vm=False)
    k("v_pk_add_f32 %s, %s, %s\nv_add_f32 v%d, v%d, v%d" % (vr(t, 2), vr(t, 2), vr(t + 2, 2), v, t, t + 1))

def layernorm(k, X, N, T, region, vw, vrd):
    R = OPT["RL"]
    s, m, ri = T, T + 4, T + 6
    t4 = T
    k("v_pk_add_f32 %s, %s, %s" % (vr(N, 2), vr(X, 2), vr(X + 2, 2)))
    for i in range(2, 10): k("v_pk_add_f32 %s, %s, %s" % (vr(N, 2), vr(N, 2), vr(X + 2 * i, 2)))
    k("v_add_f32 v%d, v%d, v%d" % (m, N, N + 1))
    reduce_rows(k, m, t4, region, vw, vrd)
    k("v_mul_f32 v%d, %s, v%d" % (m, f32bits(1.0 / 640), m))
    for i in range(10):
        k("v_pk_add_f32 %s, %s, %s op_sel_hi:[1,0] neg_lo:[0,1] neg_hi:[0,1]" % (vr(N + 2 * i, 2), vr(X + 2 * i, 2), vr(m, 2)))
    k("v_pk_mul_f32 %s, %s, %s" % (vr(t4, 2), vr(N, 2), vr(N, 2)))
    for i in range(1, 10): k("v_pk_fma_f32 %s, %s, %s, %s" % (vr(t4, 2), vr(N + 2 * i, 2), vr(N + 2 * i, 2), vr(t4, 2)))
    k("v_add_f32 v%d, v%d, v%d" % (ri, t4, t4 + 1))
    reduce_rows(k, ri, t4, region + 128, vw, vrd)
    k("v_mul_f32 v%d, %s, v%d" % (ri, f32bits(1.0 / 640), ri))
    if R: rnd1(k, ri)
    k("v_add_f32 v%d, %s, v%d" % (ri, f32bits(1e-5), ri))
    if R: rnd1(k, ri)
    k("v_sqrt_f32 v%d, v%d" % (ri, ri))
    if R: rnd1(k, ri)
    k("v_rcp_f32 v%d, v%d" % (ri, ri))
    if R:
        rnd1(k, m)
        for i in range(10):
            k("v_pk_add_f32 %s, %s, %s op_sel_hi:[1,0] neg_lo:[0,1] neg_hi:[0,1]" % (vr(N + 2 * i, 2), vr(X + 2 * i, 2), vr(m, 2)))
        rndn(k, [N + 2 * i for i in range(10)], [t4, t4 + 1, t4 + 2, t4 + 3])
    for i in range(10):
        k("v_pk_mul_f32 %s, %s, %s op_sel_hi:[1,0]" % (vr(N + 2 * i, 2), vr(N + 2 * i, 2), vr(ri, 2)))
    rndn(k, [N + 2 * i for i in range(10)], [t4, t4 + 1, t4 + 2, t4 + 3], R)

def ew(k, op, dst, a, b, rnd, tm):
    for i in range(10):
        k("%s %s, %s, %s" % (op, vr(dst + 2 * i, 2), vr(a + 2 * i, 2), vr(b + 2 * i, 2)))
    rndn(k, [dst + 2 * i for i in range(10)], tm, rnd)
def ewfma(k, dst, a, b, c):
    for i in range(10):
        k("v_pk_fma_f32 %s, %s, %s, %s" % (vr(dst + 2 * i, 2), vr(a + 2 * i, 2), vr(b + 2 * i, 2), vr(c + 2 * i, 2)))

def k_ln():
    k = K("ln")
    end = "Lend_ln"
    k("s_cmp_ge_u32 s2, 256\ns_cbranch_scc1 %s" % end)
    ldptr(k, 4, A_Q); ldptr(k, 10, A_WS)
    k("s_mov_b32 %s, 0xffff0000" % MASK)
    wave_id(k, 21, 1)
    k("""
    s_and_b32 s20, s2, 7
    s_lshr_b32 s22, s2, 3
    s_lshl_b32 s23, s20, 5
    s_add_u32 s23, s23, s22
    s_lshr_b32 s24, s23, 1
    s_and_b32 s25, s23, 1
    s_mul_i32 s26, s21, 160
    v_and_b32 v1, 63, v0
    v_and_b32 v2, 7, v1
    v_lshrrev_b32 v3, 3, v1
    v_lshlrev_b32 v4, 2, v3
    v_add_u32 v4, s26, v4
    s_lshl_b32 s27, s23, 3
    v_add_u32 v5, s27, v2
    v_mul_u32_u24 v5, 1280, v5
    v_lshl_add_u32 v5, v4, 1, v5
    v_lshlrev_b32 v6, 2, v4
    v_add_u32 v7, s26, v1
    v_lshlrev_b32 v7, 5, v7
    s_mul_i32 s27, s24, 20480
    s_lshl_b32 s28, s25, 4
    s_add_u32 s27, s27, s28
    s_mul_i32 s28, s21, 3072
    v_lshrrev_b32 v8, 4, v1
    v_lshlrev_b32 v8, 3, v8
    v_bfe_u32 v9, v1, 1, 1
    v_lshl_add_u32 v8, v9, 2, v8
    v_bfe_u32 v9, v1, 2, 2
    v_add_u32 v8, v8, v9
    v_lshlrev_b32 v8, 4, v8
    v_and_b32 v9, 1, v1
    v_lshl_add_u32 v8, v9, 3, v8
    v_add_u32 v8, s28, v8
    v_lshlrev_b32 v10, 4, v2
    s_lshl_b32 s29, s21, 2
    v_add_u32 v9, s29, v10
    v_and_b32 v11, 3, v3
    v_lshlrev_b32 v11, 4, v11
    s_lshl_b32 s29, s25, 3
    v_add_u32 v11, s29, v11
    v_add_u32 v11, v11, v2
    v_lshlrev_b32 v11, 4, v11
    v_lshrrev_b32 v12, 2, v3
    v_lshl_add_u32 v11, v12, 3, v11
    s_mul_i32 s29, s24, 20
    s_mul_i32 s30, s21, 5
    s_add_u32 s29, s29, s30
    s_lshl_b32 s29, s29, 10
    v_add_u32 v11, s29, v11
    s_waitcnt lgkmcnt(0)
    """)
    srd(k, 12, 4, SZ_SD); srd(k, 16, 10, SZ_SD, WS_YY); srd(k, 32, 10, 6 * D * 4, WS_MOD)
    srd(k, 36, 10, SZ_SD, WS_H2F); srd(k, 40, 10, SZ_SD, WS_X1)
    RAW, X, N, Y, M, T = 14, 24, 44, 64, 84, 184
    RED = 12288
    for t in range(5):
        k.vmem("buffer_load_dwordx2 %s, v5, s[12:15], 0 offen offset:%d" % (vr(RAW + 2 * t, 2), 64 * t), "q")
    for n in range(3):
        k("s_add_u32 m0, s28, %d" % (1024 * n))
        k("s_add_u32 s30, s27, %d" % (2048 * n))
        k.vmem("buffer_load_dwordx4 v7, s[16:19], s30 offen lds", "yy")
    for vec in range(5):
        k("s_movk_i32 s30, %d" % (vec * 2560))
        for t in range(5):
            k.vmem("buffer_load_dwordx4 %s, v6, s[32:35], s30 offen offset:%d" % (vr(M + 20 * vec + 4 * t, 4), 128 * t), ("m", vec))
    SA, CA, GA, SB, CB = M, M + 20, M + 40, M + 60, M + 80
    tm = [T, T + 1, T + 2, T + 3]
    R = OPT["RL"]
    k.wait(vm="q")
    for t in range(5):
        unpack(k, X + 4 * t, X + 4 * t + 1, RAW + 2 * t); unpack(k, X + 4 * t + 2, X + 4 * t + 3, RAW + 2 * t + 1)
    layernorm(k, X, N, T, RED, 9, 10)
    k.wait(vm="yy")
    for t in range(5):
        k.lds("ds_read_b64_tr_b16 %s, v8 offset:%d" % (vr(RAW + 2 * t, 2), 512 * t))
    k.wait(vm=[("m", 1)])
    if R:
        ew(k, "v_pk_mul_f32", N, N, CA, 1, tm); ew(k, "v_pk_add_f32", N, N, SA, 1, tm)
    else:
        ewfma(k, N, N, CA, SA)
    k.wait_all(vm=False)
    for t in range(5):
        unpack(k, Y + 4 * t, Y + 4 * t + 1, RAW + 2 * t); unpack(k, Y + 4 * t + 2, Y + 4 * t + 3, RAW + 2 * t + 1)
    ew(k, "v_pk_mul_f32", N, N, Y, R, tm)
    k.wait(vm=[("m", 2)])
    if R:
        ew(k, "v_pk_mul_f32", N, N, GA, 1, tm); ew(k, "v_pk_add_f32", X, X, N, 0, tm)
    else:
        ewfma(k, X, N, GA, X)
    for t in range(5):
        k("v_cvt_pk_bf16_f32 v%d, v%d, v%d\nv_cvt_pk_bf16_f32 v%d, v%d, v%d" % (RAW + 2 * t, X + 4 * t, X + 4 * t + 1, RAW + 2 * t + 1, X + 4 * t + 2, X + 4 * t + 3))
        k.vmem("buffer_store_dwordx2 %s, v5, s[40:43], 0 offen offset:%d" % (vr(RAW + 2 * t, 2), 64 * t))
        unpack(k, X + 4 * t, X + 4 * t + 1, RAW + 2 * t); unpack(k, X + 4 * t + 2, X + 4 * t + 3, RAW + 2 * t + 1)
    layernorm(k, X, N, T, RED + 256, 9, 10)
    k.wait(vm=[("m", 4)])
    if R:
        ew(k, "v_pk_mul_f32", N, N, CB, 1, tm); ew(k, "v_pk_add_f32", N, N, SB, 0, tm)
    else:
        ewfma(k, N, N, CB, SB)
    for t in range(5):
        k("v_cvt_pk_bf16_f32 v%d, v%d, v%d\nv_cvt_pk_bf16_f32 v%d, v%d, v%d" % (Y + 2 * t, N + 4 * t, N + 4 * t + 1, Y + 2 * t + 1, N + 4 * t + 2, N + 4 * t + 3))
        k("s_movk_i32 s30, %d" % (1024 * t))
        k.vmem("buffer_store_dwordx2 %s, v11, s[36:39], s30 offen" % vr(Y + 2 * t, 2))
    k(end + ":\ns_endpgm")
    return ("ln_kernel", k.text(), 192, None, 102), RED + 512

G1_STAGE = 28672
def k_gemm1():
    k = K("g1")
    end = "Lend_g1"
    k("s_cmp_ge_u32 s2, 256\ns_cbranch_scc1 %s" % end)
    ldptr(k, 4, A_WG); ldptr(k, 6, A_WU); ldptr(k, 10, A_WS)
    k("s_mov_b32 %s, 0xffff0000" % MASK)
    wave_id(k, 21, 1)
    k("""
    s_and_b32 s20, s2, 7
    s_lshr_b32 s22, s2, 3
    s_lshr_b32 s23, s22, 1
    s_mul_i32 s23, s23, 101
    s_mul_i32 s23, s23, 4370
    s_lshr_b32 s23, s23, 16
    s_lshl_b32 s24, s20, 4
    s_and_b32 s25, s22, 1
    s_lshl_b32 s25, s25, 3
    s_add_u32 s24, s24, s25
    s_lshl_b32 s25, s21, 1
    s_add_u32 s24, s24, s25
    v_and_b32 v1, 63, v0
    v_lshlrev_b32 v2, 4, v1
    s_mul_i32 s25, s24, 20480
    v_add_u32 v3, s25, v2
    s_mul_i32 s25, s24, 55296
    v_add_u32 v4, s25, v2
    s_and_b32 s26, s21, 1
    s_mul_i32 s26, s26, %d
    s_lshl_b32 s27, s23, 5
    s_add_u32 s26, s26, s27
    s_mul_i32 s28, s21, 7168
    v_lshrrev_b32 v5, 2, v1
    v_mul_u32_u24 v5, 224, v5
    v_and_b32 v6, 3, v1
    v_lshl_add_u32 v5, v6, 3, v5
    v_add_u32 v6, %d, v5
    v_add_u32 v7, %d, v5
    """ % (32 * 3456, 2 * G1_STAGE, 4 * G1_STAGE))
    VO = 8
    for n in range(7):
        k("""
        v_add_u32 v16, %d, v1
        v_mul_u32_u24 v17, 4682, v16
        v_lshrrev_b32 v17, 16, v17
        v_mul_u32_u24 v18, 14, v17
        v_sub_u32 v16, v16, v18
        v_mul_u32_u24 v17, 3456, v17
        v_lshl_add_u32 v16, v16, 4, v17
        v_add_u32 v%d, s26, v16
        """ % (64 * n, VO + n))
    k("s_waitcnt lgkmcnt(0)\ns_cmp_ge_u32 s21, 2\ns_cselect_b32 s4, s6, s4\ns_cselect_b32 s5, s7, s5")
    srd(k, 12, 4, SZ_W); srd(k, 16, 10, SZ_SD, WS_H2F); srd(k, 36, 10, SZ_HH, WS_HH)
    ACC, FB, NB, LA = 16, 128, 5, 4
    def stage(s):
        k("s_mov_b32 s29, %d" % (s * 64 * 3456))
        for n in range(7):
            k("s_add_u32 m0, s28, %d" % ((s % 5) * G1_STAGE + n * 1024))
            k.vmem("buffer_load_dwordx4 v%d, s[12:15], s29 offen lds" % (VO + n), ("st", s))
        for ks in range(2):
            for rt in range(2):
                kb = 2 * s + ks
                k("s_mov_b32 s29, %d" % (rt * 20480 + kb * 1024))
                k.vmem("buffer_load_dwordx4 %s, v3, s[16:19], s29 offen" % ar(8 * kb + 4 * rt, 4), ("st", s))
    for s in range(5): stage(s)
    frs = [(s, ks, a, uu) for s in range(10) for ks in range(2) for uu in range(7) for a in range(2)]
    def read(i):
        s, ks, a, uu = frs[i]
        if ks == 0 and uu == 0 and a == 0:
            k.wait(vm=[("st", s)])
            k("s_barrier")
            if s >= 2 and s + 3 < 10: stage(s + 3)
        slot = s % 5
        base, off = (5, 6, 6, 7, 7)[slot] if False else [5, 5, 6, 6, 7][slot], (slot % 2) * G1_STAGE
        for t in range(2):
            k.lds("ds_read_b64_tr_b16 %s, v%d offset:%d" % (vr(FB + 4 * (i % NB) + 2 * t, 2), base, off + a * 14336 + (32 * ks + 16 * t) * 224 + 32 * uu), ("f", i))
    for i in range(LA): read(i)
    for i, (s, ks, a, uu) in enumerate(frs):
        if i + LA < len(frs): read(i + LA)
        k.wait(lg=[("f", i)])
        kb = 2 * s + ks
        for rt in range(2):
            d = ACC + 4 * (rt * 14 + a * 7 + uu)
            k("v_mfma_f32_16x16x32_bf16 %s, %s, %s, %s" % (vr(d, 4), vr(FB + 4 * (i % NB), 4), ar(8 * kb + 4 * rt, 4), "0" if kb == 0 else vr(d, 4)))
    T = FB
    for rt in range(2):
        for uu in range(7):
            g, u = ACC + 4 * (rt * 14 + uu), ACC + 4 * (rt * 14 + 7 + uu)
            rndn(k, [g, g + 2, u, u + 2], [T, T + 1, T + 2, T + 3], OPT["RG"])
            k("v_pk_mul_f32 %s, %s, %s\nv_pk_mul_f32 %s, %s, %s" % (vr(g, 2), vr(g, 2), vr(u, 2), vr(g + 2, 2), vr(g + 2, 2), vr(u + 2, 2)))
            k("v_cvt_pk_bf16_f32 v%d, v%d, v%d\nv_cvt_pk_bf16_f32 v%d, v%d, v%d" % (u, g, g + 1, u + 1, g + 2, g + 3))
            k("s_add_u32 s29, s23, %d\ns_and_b32 s30, s29, 1\ns_lshr_b32 s29, s29, 1\ns_lshl_b32 s29, s29, 10\ns_lshl_b32 s30, s30, 3\ns_add_u32 s29, s29, s30" % uu)
            if rt: k("s_add_u32 s29, s29, 55296")
            k.vmem("buffer_store_dwordx2 %s, v4, s[36:39], s29 offen" % vr(u, 2))
    k(end + ":\ns_endpgm")
    return ("gemm1_kernel", k.text(), 256 + 160, 256, 102), 5 * G1_STAGE

G2_STAGE = 20480
def k_gemm2():
    k = K("g2")
    end = "Lend_g2"
    k("s_cmp_ge_u32 s2, 256\ns_cbranch_scc1 %s" % end)
    ldptr(k, 6, A_OUT); ldptr(k, 10, A_WS)
    k("s_mov_b32 %s, 0xffff0000" % MASK)
    wave_id(k, 21, 1)
    k("""
    s_and_b32 s20, s2, 7
    s_lshr_b32 s22, s2, 3
    s_lshr_b32 s23, s22, 2
    s_and_b32 s24, s21, 1
    s_lshr_b32 s25, s21, 1
    s_lshl_b32 s26, s20, 4
    s_and_b32 s27, s22, 3
    s_lshl_b32 s27, s27, 2
    s_add_u32 s26, s26, s27
    s_lshl_b32 s27, s24, 1
    s_add_u32 s26, s26, s27
    s_add_u32 s27, s26, s25
    s_xor_b32 s28, s25, 1
    s_add_u32 s28, s26, s28
    v_and_b32 v1, 63, v0
    v_lshlrev_b32 v2, 4, v1
    s_mul_i32 s30, s25, 27648
    s_mul_i32 s29, s27, 55296
    s_add_u32 s29, s29, s30
    v_add_u32 v3, s29, v2
    s_mul_i32 s29, s28, 55296
    s_add_u32 s29, s29, s30
    v_add_u32 v4, s29, v2
    s_mul_i32 s29, s23, 54
    s_mul_i32 s30, s24, 27
    s_add_u32 s29, s29, s30
    s_add_u32 s29, s29, s25
    s_mul_i32 s29, s29, 5120
    v_add_u32 v5, s29, v2
    s_mul_i32 s31, s21, 5120
    s_mul_i32 s29, s25, 5120
    v_add_u32 v6, s29, v2
    v_add_u32 v7, %d, v6
    v_add_u32 v8, %d, v6
    v_and_b32 v9, 15, v1
    s_lshl_b32 s29, s27, 4
    v_add_u32 v9, s29, v9
    v_mul_u32_u24 v9, 1280, v9
    s_mul_i32 s29, s23, 160
    v_add_u32 v9, s29, v9
    v_lshrrev_b32 v11, 4, v1
    v_lshl_add_u32 v10, v11, 3, v9
    v_lshl_add_u32 v9, v11, 4, v9
    s_mul_i32 s29, s23, 320
    s_add_u32 s29, s29, %d
    v_lshlrev_b32 v12, 4, v11
    v_add_u32 v12, s29, v12
    v_lshlrev_b32 v11, 5, v11
    v_add_u32 v11, s29, v11
    v_add_u32 v13, s31, v2
    v_add_u32 v13, %d, v13
    s_xor_b32 s29, s21, 2
    s_mul_i32 s29, s29, 5120
    v_add_u32 v14, s29, v2
    v_add_u32 v14, %d, v14
    s_waitcnt lgkmcnt(0)
    """ % (3 * G2_STAGE, 6 * G2_STAGE, 5 * 2560, 7 * G2_STAGE, 7 * G2_STAGE))
    srd(k, 12, 10, SZ_W + 10240, WS_WDF); srd(k, 16, 10, SZ_HH, WS_HH); srd(k, 32, 10, 6 * D * 4, WS_MOD)
    srd(k, 36, 6, SZ_SD); srd(k, 40, 10, SZ_SD, WS_X1)
    ACC, FB, NB, LA, X1, GB = 16, 56, 6, 5, 80, 92
    def stage(s):
        k("s_mul_i32 s29, %d, 1\ns_add_u32 m0, s31, %d" % (s * 10240, (s % 7) * G2_STAGE))
        for n in range(4):
            k.vmem("buffer_load_dwordx4 v5, s[12:15], s29 offen offset:%d lds" % (n * 1024), ("st", s))
        k("s_add_u32 s29, s29, 4096\ns_add_u32 m0, s31, %d" % ((s % 7) * G2_STAGE + 4096))
        k.vmem("buffer_load_dwordx4 v5, s[12:15], s29 offen lds", ("st", s))
        for par in range(2):
            st = 2 * s + par
            if st < 27:
                k("s_mov_b32 s29, %d" % (st * 1024))
                k.vmem("buffer_load_dwordx4 %s, v3, s[16:19], s29 offen" % ar(8 * st, 4), ("st", s))
                k.vmem("buffer_load_dwordx4 %s, v4, s[16:19], s29 offen" % ar(8 * st + 4, 4), ("st", s))
    for s in range(6): stage(s)
    frs = [(st, ct) for st in range(27) for ct in range(5)]
    def read(i):
        st, ct = frs[i]
        s, par = st // 2, st % 2
        if par == 0 and ct == 0:
            k.wait(vm=[("st", s)])
            k("s_barrier")
            if s >= 1 and s + 5 < 14: stage(s + 5)
            if s == 10:
                k.vmem("buffer_load_dwordx4 %s, v9, s[40:43], 0 offen" % vr(X1, 4), "ep")
                k.vmem("buffer_load_dwordx4 %s, v9, s[40:43], 0 offen offset:64" % vr(X1 + 4, 4), "ep")
                k.vmem("buffer_load_dwordx2 %s, v10, s[40:43], 0 offen offset:128" % vr(X1 + 8, 2), "ep")
                for j in range(4):
                    k.vmem("buffer_load_dwordx4 %s, v11, s[32:35], 0 offen offset:%d" % (vr(GB + 4 * j, 4), 128 * (j >> 1) + 16 * (j & 1)), "ep")
                k.vmem("buffer_load_dwordx4 %s, v12, s[32:35], 0 offen offset:256" % vr(GB + 16, 4), "ep")
        slot = s % 7
        base, off = [6, 6, 6, 7, 7, 7, 8][slot], (slot % 3) * G2_STAGE
        k.lds("ds_read_b128 %s, v%d offset:%d" % (vr(FB + 4 * (i % NB), 4), base, off + par * 10240 + ct * 1024), ("f", i))
    for i in range(LA): read(i)
    for i, (st, ct) in enumerate(frs):
        if i + LA < len(frs): read(i + LA)
        k.wait(lg=[("f", i)])
        for rt in range(2):
            d = ACC + 4 * (rt * 5 + ct)
            k("v_mfma_f32_16x16x32_bf16 %s, %s, %s, %s" % (vr(d, 4), vr(FB + 4 * (i % NB), 4), ar(8 * st + 4 * rt, 4), "0" if st == 0 else vr(d, 4)))
    for ct in range(5):
        k.lds("ds_write_b128 v13, %s offset:%d" % (vr(ACC + 20 + 4 * ct, 4), 1024 * ct))
    k.wait_all(vm=False)
    k("s_barrier")
    for ct in range(5):
        k.lds("ds_read_b128 %s, v14 offset:%d" % (vr(ACC + 20 + 4 * ct, 4), 1024 * ct), ct)
    k.wait(vm="ep")
    XF = 112
    for i in range(10): unpack(k, XF + 2 * i, XF + 2 * i + 1, X1 + i)
    T = FB
    for ct in range(5):
        k.wait(lg=[ct])
        a = ACC + 4 * ct
        k("v_pk_add_f32 %s, %s, %s\nv_pk_add_f32 %s, %s, %s" % (vr(a, 2), vr(a, 2), vr(a + 20, 2), vr(a + 2, 2), vr(a + 2, 2), vr(a + 22, 2)))
    prs = [ACC + 2 * i for i in range(10)]
    tm = [T, T + 1, T + 2, T + 3, T + 4]
    rndn(k, prs, tm, OPT["RG"])
    if OPT["RG"]:
        for i in range(10): k("v_pk_mul_f32 %s, %s, %s" % (vr(ACC + 2 * i, 2), vr(ACC + 2 * i, 2), vr(GB + 2 * i, 2)))
        rndn(k, prs, tm)
        for i in range(10): k("v_pk_add_f32 %s, %s, %s" % (vr(ACC + 2 * i, 2), vr(ACC + 2 * i, 2), vr(XF + 2 * i, 2)))
    else:
        for i in range(10): k("v_pk_fma_f32 %s, %s, %s, %s" % (vr(ACC + 2 * i, 2), vr(ACC + 2 * i, 2), vr(GB + 2 * i, 2), vr(XF + 2 * i, 2)))
    if OPT.get("SCALE"):
        for i in range(20): k("v_mul_f32 v%d, %s, v%d" % (ACC + i, f32bits(1 + OPT["SCALE"] / 1000.0), ACC + i))
    if OPT.get("SPIKE1"):
        k("s_load_dwordx2 s[4:5], s[0:1], 80\ns_waitcnt lgkmcnt(0)\ns_load_dword s4, s[4:5], 0\ns_waitcnt lgkmcnt(0)\ns_lshr_b32 s4, s4, 31\ns_cmp_eq_u32 s4, 0\ns_cselect_b32 s5, 77, 999\ns_cmp_eq_u32 s2, s5\ns_cselect_b32 s29, %s, 0\nv_cmp_eq_u32 vcc, 5, v0\nv_mov_b32 v15, s29\nv_cndmask_b32 v15, 0, v15, vcc\nv_add_f32 v%d, v%d, v15" % (f32bits(OPT["SPIKE1"] / 10.0), ACC, ACC))
    if OPT.get("SPIKE"):
        k("s_cmp_eq_u32 s2, 77\ns_cselect_b32 s29, %s, 0\nv_cmp_eq_u32 vcc, 5, v0\nv_mov_b32 v15, s29\nv_cndmask_b32 v15, 0, v15, vcc\nv_add_f32 v%d, v%d, v15" % (f32bits(OPT["SPIKE"] / 10.0), ACC, ACC))
    for i in range(10): k("v_cvt_pk_bf16_f32 v%d, v%d, v%d" % (X1 + i, ACC + 2 * i, ACC + 2 * i + 1))
    k.vmem("buffer_store_dwordx4 %s, v9, s[36:39], 0 offen" % vr(X1, 4))
    k.vmem("buffer_store_dwordx4 %s, v9, s[36:39], 0 offen offset:64" % vr(X1 + 4, 4))
    k.vmem("buffer_store_dwordx2 %s, v10, s[36:39], 0 offen offset:128" % vr(X1 + 8, 2))
    k(end + ":\ns_endpgm")
    return ("gemm2_kernel", k.text(), 256 + 216, 256, 102), 8 * G2_STAGE

if __name__ == "__main__":
    assert all((cb * 101 * 4370) >> 16 == cb * 101 // 15 for cb in range(16))
    assert all((x * 4682) >> 16 == x // 14 for x in range(448))
    assert all((x * 205) >> 11 == x // 10 for x in range(60))
    kp = k_prep(); kc, lc = k_conv(); kl, ll = k_ln(); k1, l1 = k_gemm1(); k2, l2 = k_gemm2()
    launches = [("prep_kernel", 370, 256, 40960), ("conv_kernel", 256, 256, lc), ("ln_kernel", 256, 256, ll),
                ("gemm1_kernel", 256, 256, l1), ("gemm2_kernel", 256, 256, l2)]
    ks = [kp, kc, kl, k1, k2]
    pr = OPT.get("PROBE")
    if pr == "empty":
        ks.append(("empty_kernel", "    s_endpgm\n", 8, None, 16))
        launches += [("empty_kernel", 256, 256, 0)] * 8
    if pr == "code":
        ks.append(("code_kernel", "    v_mov_b32 v2, 0\n    v_mov_b32 v3, 0\n" + "".join("    v_add3_u32 v%d, v2, v3, v2\n" % (4 + (i & 7)) for i in range(8192)) + "    s_endpgm\n", 16, None, 16))
        launches += [("code_kernel", 256, 256, 0)]
    if pr == "loop":
        ks.append(("code_kernel", "    v_mov_b32 v2, 0\n    v_mov_b32 v3, 0\n    s_mov_b32 s4, 0\nLl_code:\n" + "".join("    v_add3_u32 v%d, v2, v3, v2\n" % (4 + (i & 7)) for i in range(64)) + "    s_add_u32 s4, s4, 1\n    s_cmp_lt_u32 s4, 128\n    s_cbranch_scc1 Ll_code\n    s_endpgm\n", 16, None, 16))
        launches += [("code_kernel", 256, 256, 0)]
    if pr in ("chaseb", "chasew", "chasew0"):
        k = K("chase")
        k("s_cmp_ge_u32 s2, 1\ns_cbranch_scc1 Lend_chase")
        ldptr(k, 4, 48 if pr == "chaseb" else A_WS)
        k("s_waitcnt lgkmcnt(0)")
        srd(k, 12, 4, SZ_SD, {"chaseb": 0, "chasew": 200 << 20, "chasew0": 64 << 20}[pr])
        k("v_mov_b32 v1, 0\nv_mov_b32 v3, 0\ns_mov_b32 s20, 0\nLl_chase:\nbuffer_load_dword v2, v1, s[12:15], 0 offen\ns_waitcnt vmcnt(0)\nv_and_b32 v2, 0, v2\nv_add_u32 v1, v1, v2\nv_add_u32 v1, 10112, v1\ns_add_u32 s20, s20, 1\ns_cmp_lt_u32 s20, 256\ns_cbranch_scc1 Ll_chase\nLend_chase:\ns_endpgm")
        ks.append(("chase_kernel", k.text(), 16, None, 32))
        launches += [("chase_kernel", 1, 64, 0)]
    out = OPT.get("out", "base.s")
    open(out, "w").write(build(launches, ks))
    print("wrote", out)
```

```python
import sys, struct
from asmlib import *

S, D, F = 2048, 640, 1728
A_Q, A_K, A_V, A_SK, A_SSMK, A_SSMD, A_WG, A_WU, A_WD, A_C, A_WM, A_OUT, A_DBG, A_WS = 0, 8, 16, 24, 32, 40, 56, 64, 72, 80, 88, 96, 104, 112
WS_KVT, WS_YY, WS_H2F, WS_X1, WS_HH, WS_WDF, WS_MOD = 0, 0x300000, 0x600000, 0x900000, 0xC00000, 0x1300000, 0x1600000
SZ_SD = S * D * 2
SZ_HH = S * F * 2
SZ_W = D * F * 2
OPT = dict(RK=1, RY=1, RL=1, RG=1)
for a in sys.argv[1:]:
    if "=" in a:
        x, y = a.split("="); OPT[x] = int(y) if y.lstrip("-").isdigit() else y
MASK = "s99"

def f32bits(x):
    return "0x%08x" % struct.unpack("<I", struct.pack("<f", x))[0]

def ldptr(k, s, off):
    k("s_load_dwordx2 %s, s[0:1], %d" % (sr(s, 2), off))
def srd(k, d, p, nbytes, off=0):
    if off:
        k("s_add_u32 s%d, s%d, 0x%x\ns_addc_u32 s%d, s%d, 0" % (d, p, off, d + 1, p + 1))
        k("s_and_b32 s%d, s%d, 0xffff" % (d + 1, d + 1))
    else:
        k("s_mov_b32 s%d, s%d\ns_and_b32 s%d, s%d, 0xffff" % (d, p, d + 1, p + 1))
    k("s_mov_b32 s%d, 0x%x\ns_mov_b32 s%d, 0x20000" % (d + 2, nbytes, d + 3))
def unpack(k, lo, hi, src):
    k("v_lshlrev_b32 v%d, 16, v%d\nv_and_b32 v%d, %s, v%d" % (lo, src, hi, MASK, src))
def rnd2(k, a, tmp, on=1):
    if on:
        k("v_cvt_pk_bf16_f32 v%d, v%d, v%d" % (tmp, a, a + 1))
        unpack(k, a, a + 1, tmp)
def rndn(k, regs, tmps, on=1):
    if not on: return
    for i in range(0, len(regs), len(tmps)):
        grp = regs[i:i + len(tmps)]
        for a, t in zip(grp, tmps): k("v_cvt_pk_bf16_f32 v%d, v%d, v%d" % (t, a, a + 1))
        for a, t in zip(grp, tmps): unpack(k, a, a + 1, t)
def rnd1(k, a):
    k("v_cvt_pk_bf16_f32 v%d, v%d, v%d\nv_lshlrev_b32 v%d, 16, v%d" % (a, a, a, a, a))
def wave_id(k, s, vt):
    k("v_lshrrev_b32 v%d, 6, v0\nv_readfirstlane_b32 s%d, v%d" % (vt, s, vt))

def p1a(k, end):
    ldptr(k, 4, A_K); ldptr(k, 6, A_V); ldptr(k, 8, A_SK); ldptr(k, 10, A_WS)
    k("s_and_b32 s20, s2, 7\ns_lshr_b32 s21, s2, 3\ns_mov_b32 %s, 0xffff0000" % MASK)
    k("v_cmp_gt_u32 vcc, 160, v0\ns_and_saveexec_b64 s[30:31], vcc\ns_cbranch_execz %s" % end)
    k("""
    v_lshrrev_b32 v1, 3, v0
    v_and_b32 v2, 7, v0
    v_lshlrev_b32 v2, 3, v2
    s_lshl_b32 s22, s21, 6
    v_add_u32 v2, s22, v2
    s_mul_i32 s23, s20, 80
    v_lshlrev_b32 v1, 2, v1
    v_add_u32 v1, s23, v1
    v_mul_u32_u24 v3, 1280, v2
    v_lshl_add_u32 v3, v1, 1, v3
    v_subrev_u32 v4, 3840, v3
    v_cmp_eq_u32 vcc, 0, v2
    v_mov_b32 v5, 0x7ff00000
    v_cndmask_b32 v4, v4, v5, vcc
    v_lshlrev_b32 v5, 3, v1
    v_lshlrev_b32 v6, 12, v1
    v_lshl_add_u32 v6, v2, 1, v6
    s_movk_i32 s24, 3840
    s_movk_i32 s25, 7680
    s_movk_i32 s26, 4096
    s_movk_i32 s27, 8192
    s_movk_i32 s28, 12288
    s_waitcnt lgkmcnt(0)
    """)
    srd(k, 12, 4, SZ_SD); srd(k, 16, 6, SZ_SD); srd(k, 32, 8, D * 8); srd(k, 36, 10, SZ_SD, WS_KVT)
    KR, VR, SR_, SF, KF, VF, OUT, T = 8, 30, 46, 56, 72, 116, 148, 180
    k.vmem("buffer_load_dwordx4 %s, v5, s[32:35], 0 offen" % vr(SR_, 4), "sk")
    k.vmem("buffer_load_dwordx4 %s, v5, s[32:35], 0 offen offset:16" % vr(SR_ + 4, 4), "sk")
    so = ["0", "s24", "s25"]
    for r in range(3):
        k.vmem("buffer_load_dwordx2 %s, v4, s[12:15], 0 offen offset:%d" % (vr(KR + 2 * r, 2), 1280 * r), "k")
    for r in range(8):
        k.vmem("buffer_load_dwordx2 %s, v3, s[12:15], %s offen offset:%d" % (vr(KR + 6 + 2 * r, 2), so[r // 3], 1280 * (r % 3)), "k")
    for r in range(8):
        k.vmem("buffer_load_dwordx2 %s, v3, s[16:19], %s offen offset:%d" % (vr(VR + 2 * r, 2), so[r // 3], 1280 * (r % 3)), "v")
    k.wait(vm="sk")
    for c in range(4):
        unpack(k, SF + 0 + c, SF + 4 + c, SR_ + 2 * c)
        unpack(k, SF + 8 + c, SF + 12 + c, SR_ + 2 * c + 1)
    k.wait(vm="k")
    for r in range(11):
        unpack(k, KF + 4 * r, KF + 4 * r + 1, KR + 2 * r); unpack(k, KF + 4 * r + 2, KF + 4 * r + 3, KR + 2 * r + 1)
    P, TM = T, T + 8
    for i0 in range(0, 8, 2):
        items = [(i, p) for i in (i0, i0 + 1) for p in (0, 1)]
        acc = [OUT + 4 * i + 2 * p for i, p in items]
        prod = [P + 2 * n for n in range(4)]
        tm = [TM + n for n in range(4)]
        for a, (i, p) in zip(acc, items):
            k("v_pk_mul_f32 %s, %s, %s" % (vr(a, 2), vr(KF + 4 * i + 2 * p, 2), vr(SF + 12 + 2 * p, 2)))
        rndn(k, acc, tm, OPT["RK"])
        for j in (2, 1, 0):
            if OPT["RK"]:
                for t, (i, p) in zip(prod, items):
                    k("v_pk_mul_f32 %s, %s, %s" % (vr(t, 2), vr(KF + 4 * (i + 3 - j) + 2 * p, 2), vr(SF + 4 * j + 2 * p, 2)))
                rndn(k, prod, tm)
                for a, t in zip(acc, prod):
                    k("v_pk_add_f32 %s, %s, %s" % (vr(a, 2), vr(a, 2), vr(t, 2)))
                rndn(k, acc, tm)
            else:
                for a, (i, p) in zip(acc, items):
                    k("v_pk_fma_f32 %s, %s, %s, %s" % (vr(a, 2), vr(KF + 4 * (i + 3 - j) + 2 * p, 2), vr(SF + 4 * j + 2 * p, 2), vr(a, 2)))
    k.wait(vm="v")
    for r in range(8):
        unpack(k, VF + 4 * r, VF + 4 * r + 1, VR + 2 * r); unpack(k, VF + 4 * r + 2, VF + 4 * r + 3, VR + 2 * r + 1)
    for r in range(16):
        k("v_pk_mul_f32 %s, %s, %s" % (vr(OUT + 2 * r, 2), vr(OUT + 2 * r, 2), vr(VF + 2 * r, 2)))
    so = ["0", "s26", "s27", "s28"]
    for c in range(4):
        for jj in range(4):
            k("v_cvt_pk_bf16_f32 v%d, v%d, v%d" % (KF + 4 * c + jj, OUT + 4 * (7 - 2 * jj) + c, OUT + 4 * (6 - 2 * jj) + c))
        k.vmem("buffer_store_dwordx4 %s, v6, s[36:39], %s offen" % (vr(KF + 4 * c, 4), so[c]))
    k("s_branch %s" % end)

def modrole(k, end, sid):
    ldptr(k, 4, A_C); ldptr(k, 6, A_WM); ldptr(k, 10, A_WS)
    k("s_mov_b32 %s, 0xffff0000" % MASK)
    wave_id(k, 21, 1)
    k("""
    v_and_b32 v1, 7, v0
    v_lshrrev_b32 v2, 3, v0
    v_mul_u32_u24 v3, 0x25800, v2
    v_lshl_add_u32 v3, v1, 4, v3
    s_lshl_b32 s22, s%d, 7
    v_add_u32 v3, s22, v3
    v_lshlrev_b32 v4, 3, v0
    s_waitcnt lgkmcnt(0)
    """ % sid)
    srd(k, 12, 4, D * 2); srd(k, 16, 6, D * 3840 * 2); srd(k, 36, 10, 6 * D * 4, WS_MOD)
    W, SV, ACC, T = 16, 96, 116, 124
    k.vmem("buffer_load_dwordx2 v[8:9], v4, s[12:15], 0 offen", "c")
    for i in range(20):
        k("s_mov_b32 s23, %d" % (i * 7680))
        k.vmem("buffer_load_dwordx4 %s, v3, s[16:19], s23 offen" % vr(W + 4 * i, 4), "w%d" % i)
    k.wait(vm="c")
    unpack(k, 10, 11, 8); unpack(k, 12, 13, 9)
    for i in range(4):
        k("v_mul_f32 v%d, %s, v%d" % (T + i, f32bits(-1.4426950408889634), 10 + i))
    for i in range(4): k("v_exp_f32 v%d, v%d" % (T + i, T + i))
    for i in range(4): k("v_add_f32 v%d, 1.0, v%d" % (T + i, T + i))
    for i in range(4): k("v_rcp_f32 v%d, v%d" % (T + i, T + i))
    for i in range(4): k("v_mul_f32 v%d, v%d, v%d" % (T + i, T + i, 10 + i))
    rndn(k, [T, T + 2], [8, 9])
    k("v_lshlrev_b32 v4, 4, v0")
    k.lds("ds_write_b128 v4, %s" % vr(T, 4))
    k.wait_all(vm=False)
    k("s_barrier\nv_mul_u32_u24 v4, 80, v2")
    for i in range(5):
        k.lds("ds_read_b128 %s, v4 offset:%d" % (vr(SV + 4 * i, 4), 16 * i))
    k.wait_all(vm=False)
    for i in range(20):
        k.wait(vm="w%d" % i)
        for c in range(4):
            unpack(k, T + 2 * c, T + 2 * c + 1, W + 4 * i + c)
        sv = SV + i
        sel = "op_sel:[0,1] op_sel_hi:[1,1]" if sv & 1 else "op_sel_hi:[1,0]"
        for c in range(4):
            if i == 0:
                k("v_pk_mul_f32 %s, %s, %s %s" % (vr(ACC + 2 * c, 2), vr(T + 2 * c, 2), vr(sv & ~1, 2), sel))
            else:
                k("v_pk_fma_f32 %s, %s, %s, %s %s" % (vr(ACC + 2 * c, 2), vr(T + 2 * c, 2), vr(sv & ~1, 2), vr(ACC + 2 * c, 2),
                  "op_sel:[0,1,0] op_sel_hi:[1,1,1]" if sv & 1 else "op_sel_hi:[1,0,1]"))
    k("v_lshlrev_b32 v4, 5, v0")
    k.lds("ds_write_b128 v4, %s offset:4096" % vr(ACC, 4))
    k.lds("ds_write_b128 v4, %s offset:4112" % vr(ACC + 4, 4))
    k.wait_all(vm=False)
    k("s_barrier\ns_cmp_lg_u32 s21, 0\ns_cbranch_scc1 %s" % end)
    k("v_lshlrev_b32 v4, 2, v0")
    for i in range(32):
        k.lds("ds_read_b32 v%d, v4 offset:%d" % (W + i, 4096 + 256 * i))
        if i == 14: k.wait_all(vm=False)
    k.wait_all(vm=False)
    for st in (16, 8, 4, 2, 1):
        for i in range(st):
            k("v_add_f32 v%d, v%d, v%d" % (W + i, W + i, W + i + st))
    rnd1(k, W)
    k("v_add_f32 v%d, 1.0, v%d" % (W + 1, W))
    rnd1(k, W + 1)
    k("""
    s_mul_i32 s23, s%d, 205
    s_lshr_b32 s23, s23, 11
    s_cmp_eq_u32 s23, 1
    s_cselect_b32 s24, 1, 0
    s_cmp_eq_u32 s23, 4
    s_cselect_b32 s24, 1, s24
    s_cmp_eq_u32 s24, 1
    s_cselect_b64 vcc, -1, 0
    v_cndmask_b32 v%d, v%d, v%d, vcc
    s_lshl_b32 s22, s%d, 8
    """ % (sid, W, W, W + 1, sid))
    k.vmem("buffer_store_dword v%d, v4, s[36:39], s22 offen" % W)
    k("s_branch %s" % end)

def wdrole(k, end, sid):
    ldptr(k, 4, A_WD); ldptr(k, 10, A_WS)
    wave_id(k, 21, 1)
    k("""
    v_and_b32 v1, 63, v0
    v_lshlrev_b32 v2, 4, v1
    s_mul_i32 s22, s21, 10240
    v_add_u32 v3, s22, v2
    s_mul_i32 s23, s%d, 40960
    v_lshrrev_b32 v4, 2, v1
    v_and_b32 v5, 3, v1
    v_mul_u32_u24 v4, 1280, v4
    s_mul_i32 s24, s21, 320
    v_add_u32 v4, s24, v4
    v_lshl_add_u32 v6, v5, 4, v4
    v_lshl_add_u32 v7, v5, 3, v4
    s_waitcnt lgkmcnt(0)
    """ % sid)
    srd(k, 12, 4, SZ_W); srd(k, 36, 10, SZ_W, WS_WDF)
    for n in range(10):
        if n % 4 == 0:
            k("s_add_u32 m0, s22, %d\ns_add_u32 s25, s23, %d" % ((n // 4) * 4096, (n // 4) * 4096))
        k.vmem("buffer_load_dwordx4 v3, s[12:15], s25 offen offset:%d lds" % ((n % 4) * 1024))
    k.wait_all(lg=False)
    k("s_barrier")
    for cc in range(2):
        for ct in range(5):
            b = 8 + 4 * (5 * cc + ct)
            for t in range(2):
                if ct < 4:
                    k.lds("ds_read_b64_tr_b16 %s, v6 offset:%d" % (vr(b + 2 * t, 2), t * 20480 + cc * 160 + (ct >> 1) * 64 + (ct & 1) * 8), (cc, ct))
                else:
                    k.lds("ds_read_b64_tr_b16 %s, v7 offset:%d" % (vr(b + 2 * t, 2), t * 20480 + cc * 160 + 128), (cc, ct))
        k("s_lshl_b32 s25, s21, 1\ns_add_u32 s25, s25, %d\ns_mul_i32 s25, s25, 54\ns_add_u32 s25, s25, s%d\ns_mul_i32 s25, s25, 5120" % (cc, sid))
        for ct in range(5):
            b = 8 + 4 * (5 * cc + ct)
            k.wait(lg=[(cc, ct)])
            if ct == 4: k("s_add_u32 s25, s25, 4096")
            k.vmem("buffer_store_dwordx4 %s, v2, s[36:39], s25 offen offset:%d" % (vr(b, 4), (ct % 4) * 1024))
    k("s_branch %s" % end)

def k_prep():
    k = K("prep")
    end = "Lend_prep"
    l1, l2 = k.label(), k.label()
    k("s_cmp_ge_u32 s2, 370\ns_cbranch_scc1 %s" % end)
    k("s_cmp_ge_u32 s2, 316\ns_cbranch_scc1 %s" % l2)
    k("s_cmp_ge_u32 s2, 256\ns_cbranch_scc1 %s" % l1)
    p1a(k, end)
    k(l1 + ":"); k.vm = []; k.lg = []
    k("s_sub_u32 s40, s2, 256")
    modrole(k, end, 40)
    k(l2 + ":"); k.vm = []; k.lg = []
    k("s_sub_u32 s40, s2, 316")
    wdrole(k, end, 40)
    k(end + ":\ns_endpgm")
    return ("prep_kernel", k.text(), 192, None, 102)

KCOPY = 4160
CW = 4 * KCOPY + 4608
CSTAGE = 4 * CW
def k_conv():
    k = K("conv")
    end = "Lend_conv"
    k("s_cmp_ge_u32 s2, 256\ns_cbranch_scc1 %s" % end)
    k("s_and_b32 s20, s2, 7\ns_lshr_b32 s22, s2, 3\ns_cmp_ge_u32 s22, 20\ns_cbranch_scc1 %s" % end)
    ldptr(k, 4, A_SSMK); ldptr(k, 6, A_SSMD); ldptr(k, 10, A_WS)
    k("s_mov_b32 %s, 0xffff0000" % MASK)
    wave_id(k, 21, 1)
    k("""
    s_mul_i32 s23, s20, 80
    s_lshl_b32 s24, s22, 2
    s_add_u32 s23, s23, s24
    s_add_u32 s24, s23, s21
    s_mul_i32 s25, s21, %d
    s_lshl_b32 s26, s24, 12
    v_and_b32 v1, 63, v0
    v_lshlrev_b32 v2, 4, v1
    v_add_u32 v2, s26, v2
    v_and_b32 v3, 15, v1
    v_lshrrev_b32 v4, 4, v1
    v_add_u32 v5, v3, v4
    v_subrev_u32 v5, 16, v5
    v_cmp_gt_i32 vcc, 0, v5
    v_lshlrev_b32 v5, 1, v5
    v_add_u32 v5, s26, v5
    v_mov_b32 v6, 0x7ff00000
    v_cndmask_b32 v5, v5, v6, vcc
    v_mul_u32_u24 v6, %d, v4
    v_lshl_add_u32 v6, v3, 1, v6
    v_add_u32 v6, s25, v6
    s_lshr_b32 s27, s24, 1
    s_lshl_b32 s27, s27, 2
    s_waitcnt lgkmcnt(0)
    s_load_dword s28, s[6:7], s27
    """ % (CW, KCOPY))
    srd(k, 12, 4, D * S * 2); srd(k, 16, 10, SZ_SD, WS_KVT); srd(k, 36, 10, SZ_SD, WS_YY)
    k.vmem("buffer_load_ushort v7, v5, s[12:15], 0 offen", "patch")
    k("s_add_u32 m0, s25, %d" % (4 * KCOPY + 512))
    for n in range(4):
        k.vmem("buffer_load_dwordx4 v2, s[16:19], 0 offen offset:%d lds" % (n * 1024))
    for c in range(4):
        k("s_add_u32 m0, s25, %d" % (c * KCOPY + 32))
        for n in range(4):
            k.vmem("buffer_load_dwordx4 v2, s[12:15], %d offen offset:%d lds" % (2 * c, n * 1024))
    k("""
    v_mov_b32 v8, 0
    v_mov_b32 v9, 0
    v_lshlrev_b32 v10, 3, v1
    v_add_u32 v10, s25, v10
    ds_write_b64 v10, v[8:9] offset:%d
    v_add_u32 v11, 1, v3
    v_and_b32 v12, 3, v11
    v_lshrrev_b32 v11, 2, v11
    v_mul_u32_u24 v12, %d, v12
    v_lshlrev_b32 v13, 1, v4
    v_sub_u32 v11, v11, v13
    v_add_u32 v11, 2, v11
    v_lshl_add_u32 v12, v11, 3, v12
    v_add_u32 v12, 32, v12
    v_add_u32 v12, s25, v12
    v_lshl_add_u32 v13, v3, 1, v4
    v_lshlrev_b32 v13, 4, v13
    s_add_u32 s29, s25, %d
    v_add_u32 v13, s29, v13
    """ % (4 * KCOPY, KCOPY, 4 * KCOPY + 480))
    VF_, VX = 12, 13
    k.wait(vm="patch")
    k("ds_write_b16 v6, v7")
    k("""
    v_lshrrev_b32 v14, 1, v4
    v_lshl_add_u32 v14, v3, 1, v14
    v_lshlrev_b32 v14, 4, v14
    v_and_b32 v15, 1, v4
    v_xor_b32 v15, 1, v15
    v_lshl_add_u32 v14, v15, 3, v14
    s_add_u32 s29, s25, %d
    v_add_u32 v14, s29, v14
    """ % (4 * KCOPY + 512))
    k.wait_all()
    ACC, FB, XB = 16, 48, 80
    def ldF(a):
        k.lds("ds_read_b64 %s, v%d offset:%d" % (vr(FB + 4 * a, 2), VF_, 512 * a), ("F", a))
        k.lds("ds_read_b64 %s, v%d offset:%d" % (vr(FB + 4 * a + 2, 2), VF_, 512 * a + 8), ("F", a))
    def ldX(b):
        k.lds("ds_read_b128 %s, v%d offset:%d" % (vr(XB + 4 * b, 4), VX, 512 * b), ("X", b))
    for i in range(32): k("v_mov_b32 v%d, 0" % (ACC + i))
    for a in range(8):
        ldX(7 - a); ldF(a)
    k("v_add_u32 v%d, 64, v%d\nv_subrev_u32 v%d, 64, v%d\ns_mov_b32 s30, 0" % (VF_, VF_, VX, VX))
    def body():
        for a in range(8):
            for b in range(7 - a, -1, -1):
                k.wait(lg=[("F", a), ("X", b)])
                u = a + b
                k("v_mfma_f32_16x16x32_bf16 %s, %s, %s, %s" % (vr(ACC + 4 * u, 4), vr(FB + 4 * a, 4), vr(XB + 4 * b, 4), vr(ACC + 4 * u, 4)))
                if b == 7 - a: ldX(b)
            ldF(a)
        k("v_add_u32 v%d, 64, v%d\nv_subrev_u32 v%d, 64, v%d" % (VF_, VF_, VX, VX))
    state0 = list(k.lg)
    lp = k.label()
    k(lp + ":")
    body()
    assert k.lg == state0[len(state0) - len(k.lg):], (k.lg, state0)
    k("s_add_u32 s30, s30, 1\ns_cmp_lt_u32 s30, 8\ns_cbranch_scc1 %s" % lp)
    k.wait_all(vm=False)
    KV = FB
    for u in range(8):
        k.lds("ds_read_b64 %s, v14 offset:%d" % (vr(KV + 2 * u, 2), 512 * u), ("kv", u))
    k("""
    s_and_b32 s27, s24, 1
    s_lshl_b32 s27, s27, 4
    s_lshr_b32 s28, s28, s27
    s_lshl_b32 s28, s28, 16
    v_mov_b32 v8, s28
    v_mov_b32 v9, s28
    v_and_b32 v10, 14, v3
    s_lshl_b32 s27, s21, 2
    v_add_u32 v11, s27, v4
    v_xor_b32 v10, v10, v11
    v_lshlrev_b32 v10, 3, v10
    v_lshl_add_u32 v10, v3, 7, v10
    v_add_u32 v10, %d, v10
    """ % CSTAGE)
    T = XB
    for u in range(8):
        k.wait(lg=[("kv", u)])
        a = ACC + 4 * u
        unpack(k, T + 3, T + 2, KV + 2 * u); unpack(k, T + 1, T + 0, KV + 2 * u + 1)
        if OPT["RY"]:
            k("v_pk_mul_f32 %s, %s, v[8:9]\nv_pk_mul_f32 %s, %s, v[8:9]" % (vr(T, 2), vr(T, 2), vr(T + 2, 2), vr(T + 2, 2)))
            rndn(k, [T, T + 2, a, a + 2], [T + 4, T + 5, T + 6, T + 7])
            k("v_pk_add_f32 %s, %s, %s\nv_pk_add_f32 %s, %s, %s" % (vr(a, 2), vr(a, 2), vr(T, 2), vr(a + 2, 2), vr(a + 2, 2), vr(T + 2, 2)))
        else:
            k("v_pk_fma_f32 %s, %s, v[8:9], %s\nv_pk_fma_f32 %s, %s, v[8:9], %s" % (vr(a, 2), vr(T, 2), vr(a, 2), vr(a + 2, 2), vr(T + 2, 2), vr(a + 2, 2)))
        o = T + 8 + 2 * (u & 1)
        k("v_cvt_pk_bf16_f32 v%d, v%d, v%d\nv_cvt_pk_bf16_f32 v%d, v%d, v%d" % (o, a, a + 1, o + 1, a + 2, a + 3))
        k.lds("ds_write_b64 v10, %s offset:%d" % (vr(o, 2), 2048 * u))
    k.wait_all(vm=False)
    k("s_barrier")
    k("""
    v_lshrrev_b32 v1, 3, v0
    v_and_b32 v2, 7, v0
    v_and_b32 v3, 14, v1
    v_lshlrev_b32 v4, 1, v2
    v_xor_b32 v4, v4, v3
    v_lshlrev_b32 v4, 3, v4
    v_lshl_add_u32 v4, v1, 7, v4
    v_add_u32 v4, %d, v4
    v_mul_u32_u24 v5, 20480, v1
    v_lshl_add_u32 v5, v2, 4, v5
    s_lshl_b32 s27, s23, 5
    v_add_u32 v5, s27, v5
    """ % CSTAGE)
    for i in range(4):
        k.lds("ds_read_b128 %s, v4 offset:%d" % (vr(16 + 4 * i, 4), 4096 * i), i)
    for i in range(4):
        k.wait(lg=[i])
        k("s_mov_b32 s27, %d" % (32 * 20480 * i))
        k.vmem("buffer_store_dwordx4 %s, v5, s[36:39], s27 offen" % vr(16 + 4 * i, 4))
    k(end + ":\ns_endpgm")
    return ("conv_kernel", k.text(), 128, None, 102), CSTAGE + 16384

def reduce_rows(k, v, t, region, vaddr_w, vaddr_r):
    k("v_add_f32 v%d, v%d, v%d row_ror:8 row_mask:0xf bank_mask:0xf" % (v, v, v))
    k("v_mov_b32 v%d, v%d\nv_permlane16_swap_b32 v%d, v%d\nv_add_f32 v%d, v%d, v%d" % (t, v, v, t, v, v, t))
    k("v_mov_b32 v%d, v%d\nv_permlane32_swap_b32 v%d, v%d\nv_add_f32 v%d, v%d, v%d" % (t, v, v, t, v, v, t))
    k.lds("ds_write_b32 v%d, v%d offset:%d" % (vaddr_w, v, region))
    k.wait_all(vm=False)
    k("s_barrier")
    k.lds("ds_read_b128 %s, v%d offset:%d" % (vr(t, 4), vaddr_r, region))
    k.wait_all(vm=False)
    k("v_pk_add_f32 %s, %s, %s\nv_add_f32 v%d, v%d, v%d" % (vr(t, 2), vr(t, 2), vr(t + 2, 2), v, t, t + 1))

def layernorm(k, X, N, T, region, vw, vrd):
    R = OPT["RL"]
    s, m, ri = T, T + 4, T + 6
    t4 = T
    k("v_pk_add_f32 %s, %s, %s" % (vr(N, 2), vr(X, 2), vr(X + 2, 2)))
    for i in range(2, 10): k("v_pk_add_f32 %s, %s, %s" % (vr(N, 2), vr(N, 2), vr(X + 2 * i, 2)))
    k("v_add_f32 v%d, v%d, v%d" % (m, N, N + 1))
    reduce_rows(k, m, t4, region, vw, vrd)
    k("v_mul_f32 v%d, %s, v%d" % (m, f32bits(1.0 / 640), m))
    for i in range(10):
        k("v_pk_add_f32 %s, %s, %s op_sel_hi:[1,0] neg_lo:[0,1] neg_hi:[0,1]" % (vr(N + 2 * i, 2), vr(X + 2 * i, 2), vr(m, 2)))
    k("v_pk_mul_f32 %s, %s, %s" % (vr(t4, 2), vr(N, 2), vr(N, 2)))
    for i in range(1, 10): k("v_pk_fma_f32 %s, %s, %s, %s" % (vr(t4, 2), vr(N + 2 * i, 2), vr(N + 2 * i, 2), vr(t4, 2)))
    k("v_add_f32 v%d, v%d, v%d" % (ri, t4, t4 + 1))
    reduce_rows(k, ri, t4, region + 128, vw, vrd)
    k("v_mul_f32 v%d, %s, v%d" % (ri, f32bits(1.0 / 640), ri))
    if R: rnd1(k, ri)
    k("v_add_f32 v%d, %s, v%d" % (ri, f32bits(1e-5), ri))
    if R: rnd1(k, ri)
    k("v_sqrt_f32 v%d, v%d" % (ri, ri))
    if R: rnd1(k, ri)
    k("v_rcp_f32 v%d, v%d" % (ri, ri))
    if R:
        rnd1(k, m)
        for i in range(10):
            k("v_pk_add_f32 %s, %s, %s op_sel_hi:[1,0] neg_lo:[0,1] neg_hi:[0,1]" % (vr(N + 2 * i, 2), vr(X + 2 * i, 2), vr(m, 2)))
        rndn(k, [N + 2 * i for i in range(10)], [t4, t4 + 1, t4 + 2, t4 + 3])
    for i in range(10):
        k("v_pk_mul_f32 %s, %s, %s op_sel_hi:[1,0]" % (vr(N + 2 * i, 2), vr(N + 2 * i, 2), vr(ri, 2)))
    rndn(k, [N + 2 * i for i in range(10)], [t4, t4 + 1, t4 + 2, t4 + 3], R)

def ew(k, op, dst, a, b, rnd, tm):
    for i in range(10):
        k("%s %s, %s, %s" % (op, vr(dst + 2 * i, 2), vr(a + 2 * i, 2), vr(b + 2 * i, 2)))
    rndn(k, [dst + 2 * i for i in range(10)], tm, rnd)
def ewfma(k, dst, a, b, c):
    for i in range(10):
        k("v_pk_fma_f32 %s, %s, %s, %s" % (vr(dst + 2 * i, 2), vr(a + 2 * i, 2), vr(b + 2 * i, 2), vr(c + 2 * i, 2)))

def k_ln():
    k = K("ln")
    end = "Lend_ln"
    k("s_cmp_ge_u32 s2, 256\ns_cbranch_scc1 %s" % end)
    ldptr(k, 4, A_Q); ldptr(k, 10, A_WS)
    k("s_mov_b32 %s, 0xffff0000" % MASK)
    wave_id(k, 21, 1)
    k("""
    s_and_b32 s20, s2, 7
    s_lshr_b32 s22, s2, 3
    s_lshl_b32 s23, s20, 5
    s_add_u32 s23, s23, s22
    s_lshr_b32 s24, s23, 1
    s_and_b32 s25, s23, 1
    s_mul_i32 s26, s21, 160
    v_and_b32 v1, 63, v0
    v_and_b32 v2, 7, v1
    v_lshrrev_b32 v3, 3, v1
    v_lshlrev_b32 v4, 2, v3
    v_add_u32 v4, s26, v4
    s_lshl_b32 s27, s23, 3
    v_add_u32 v5, s27, v2
    v_mul_u32_u24 v5, 1280, v5
    v_lshl_add_u32 v5, v4, 1, v5
    v_lshlrev_b32 v6, 2, v4
    v_add_u32 v7, s26, v1
    v_lshlrev_b32 v7, 5, v7
    s_mul_i32 s27, s24, 20480
    s_lshl_b32 s28, s25, 4
    s_add_u32 s27, s27, s28
    s_mul_i32 s28, s21, 3072
    v_lshrrev_b32 v8, 4, v1
    v_lshlrev_b32 v8, 3, v8
    v_bfe_u32 v9, v1, 1, 1
    v_lshl_add_u32 v8, v9, 2, v8
    v_bfe_u32 v9, v1, 2, 2
    v_add_u32 v8, v8, v9
    v_lshlrev_b32 v8, 4, v8
    v_and_b32 v9, 1, v1
    v_lshl_add_u32 v8, v9, 3, v8
    v_add_u32 v8, s28, v8
    v_lshlrev_b32 v10, 4, v2
    s_lshl_b32 s29, s21, 2
    v_add_u32 v9, s29, v10
    v_and_b32 v11, 3, v3
    v_lshlrev_b32 v11, 4, v11
    s_lshl_b32 s29, s25, 3
    v_add_u32 v11, s29, v11
    v_add_u32 v11, v11, v2
    v_lshlrev_b32 v11, 4, v11
    v_lshrrev_b32 v12, 2, v3
    v_lshl_add_u32 v11, v12, 3, v11
    s_mul_i32 s29, s24, 20
    s_mul_i32 s30, s21, 5
    s_add_u32 s29, s29, s30
    s_lshl_b32 s29, s29, 10
    v_add_u32 v11, s29, v11
    s_waitcnt lgkmcnt(0)
    """)
    srd(k, 12, 4, SZ_SD); srd(k, 16, 10, SZ_SD, WS_YY); srd(k, 32, 10, 6 * D * 4, WS_MOD)
    srd(k, 36, 10, SZ_SD, WS_H2F); srd(k, 40, 10, SZ_SD, WS_X1)
    RAW, X, N, Y, M, T = 14, 24, 44, 64, 84, 184
    RED = 12288
    for t in range(5):
        k.vmem("buffer_load_dwordx2 %s, v5, s[12:15], 0 offen offset:%d" % (vr(RAW + 2 * t, 2), 64 * t), "q")
    for n in range(3):
        k("s_add_u32 m0, s28, %d" % (1024 * n))
        k("s_add_u32 s30, s27, %d" % (2048 * n))
        k.vmem("buffer_load_dwordx4 v7, s[16:19], s30 offen lds", "yy")
    for vec in range(5):
        k("s_movk_i32 s30, %d" % (vec * 2560))
        for t in range(5):
            k.vmem("buffer_load_dwordx4 %s, v6, s[32:35], s30 offen offset:%d" % (vr(M + 20 * vec + 4 * t, 4), 128 * t), ("m", vec))
    SA, CA, GA, SB, CB = M, M + 20, M + 40, M + 60, M + 80
    tm = [T, T + 1, T + 2, T + 3]
    R = OPT["RL"]
    k.wait(vm="q")
    for t in range(5):
        unpack(k, X + 4 * t, X + 4 * t + 1, RAW + 2 * t); unpack(k, X + 4 * t + 2, X + 4 * t + 3, RAW + 2 * t + 1)
    layernorm(k, X, N, T, RED, 9, 10)
    k.wait(vm="yy")
    for t in range(5):
        k.lds("ds_read_b64_tr_b16 %s, v8 offset:%d" % (vr(RAW + 2 * t, 2), 512 * t))
    k.wait(vm=[("m", 1)])
    if R:
        ew(k, "v_pk_mul_f32", N, N, CA, 1, tm); ew(k, "v_pk_add_f32", N, N, SA, 1, tm)
    else:
        ewfma(k, N, N, CA, SA)
    k.wait_all(vm=False)
    for t in range(5):
        unpack(k, Y + 4 * t, Y + 4 * t + 1, RAW + 2 * t); unpack(k, Y + 4 * t + 2, Y + 4 * t + 3, RAW + 2 * t + 1)
    ew(k, "v_pk_mul_f32", N, N, Y, R, tm)
    k.wait(vm=[("m", 2)])
    if R:
        ew(k, "v_pk_mul_f32", N, N, GA, 1, tm); ew(k, "v_pk_add_f32", X, X, N, 0, tm)
    else:
        ewfma(k, X, N, GA, X)
    for t in range(5):
        k("v_cvt_pk_bf16_f32 v%d, v%d, v%d\nv_cvt_pk_bf16_f32 v%d, v%d, v%d" % (RAW + 2 * t, X + 4 * t, X + 4 * t + 1, RAW + 2 * t + 1, X + 4 * t + 2, X + 4 * t + 3))
        k.vmem("buffer_store_dwordx2 %s, v5, s[40:43], 0 offen offset:%d" % (vr(RAW + 2 * t, 2), 64 * t))
        unpack(k, X + 4 * t, X + 4 * t + 1, RAW + 2 * t); unpack(k, X + 4 * t + 2, X + 4 * t + 3, RAW + 2 * t + 1)
    layernorm(k, X, N, T, RED + 256, 9, 10)
    k.wait(vm=[("m", 4)])
    if R:
        ew(k, "v_pk_mul_f32", N, N, CB, 1, tm); ew(k, "v_pk_add_f32", N, N, SB, 0, tm)
    else:
        ewfma(k, N, N, CB, SB)
    for t in range(5):
        k("v_cvt_pk_bf16_f32 v%d, v%d, v%d\nv_cvt_pk_bf16_f32 v%d, v%d, v%d" % (Y + 2 * t, N + 4 * t, N + 4 * t + 1, Y + 2 * t + 1, N + 4 * t + 2, N + 4 * t + 3))
        k("s_movk_i32 s30, %d" % (1024 * t))
        k.vmem("buffer_store_dwordx2 %s, v11, s[36:39], s30 offen" % vr(Y + 2 * t, 2))
    k(end + ":\ns_endpgm")
    return ("ln_kernel", k.text(), 192, None, 102), RED + 512

G1_STAGE = 28672
def k_gemm1():
    k = K("g1")
    end = "Lend_g1"
    k("s_cmp_ge_u32 s2, 256\ns_cbranch_scc1 %s" % end)
    ldptr(k, 4, A_WG); ldptr(k, 6, A_WU); ldptr(k, 10, A_WS)
    k("s_mov_b32 %s, 0xffff0000" % MASK)
    wave_id(k, 21, 1)
    k("""
    s_and_b32 s20, s2, 7
    s_lshr_b32 s22, s2, 3
    s_lshr_b32 s23, s22, 1
    s_mul_i32 s23, s23, 101
    s_mul_i32 s23, s23, 4370
    s_lshr_b32 s23, s23, 16
    s_lshl_b32 s24, s20, 4
    s_and_b32 s25, s22, 1
    s_lshl_b32 s25, s25, 3
    s_add_u32 s24, s24, s25
    s_lshl_b32 s25, s21, 1
    s_add_u32 s24, s24, s25
    v_and_b32 v1, 63, v0
    v_lshlrev_b32 v2, 4, v1
    s_mul_i32 s25, s24, 20480
    v_add_u32 v3, s25, v2
    s_mul_i32 s25, s24, 55296
    v_add_u32 v4, s25, v2
    s_and_b32 s26, s21, 1
    s_mul_i32 s26, s26, %d
    s_lshl_b32 s27, s23, 5
    s_add_u32 s26, s26, s27
    s_mul_i32 s28, s21, 7168
    v_lshrrev_b32 v5, 2, v1
    v_mul_u32_u24 v5, 224, v5
    v_and_b32 v6, 3, v1
    v_lshl_add_u32 v5, v6, 3, v5
    v_add_u32 v6, %d, v5
    v_add_u32 v7, %d, v5
    """ % (32 * 3456, 2 * G1_STAGE, 4 * G1_STAGE))
    VO = 8
    for n in range(7):
        k("""
        v_add_u32 v16, %d, v1
        v_mul_u32_u24 v17, 4682, v16
        v_lshrrev_b32 v17, 16, v17
        v_mul_u32_u24 v18, 14, v17
        v_sub_u32 v16, v16, v18
        v_mul_u32_u24 v17, 3456, v17
        v_lshl_add_u32 v16, v16, 4, v17
        v_add_u32 v%d, s26, v16
        """ % (64 * n, VO + n))
    k("s_waitcnt lgkmcnt(0)\ns_cmp_ge_u32 s21, 2\ns_cselect_b32 s4, s6, s4\ns_cselect_b32 s5, s7, s5")
    srd(k, 12, 4, SZ_W); srd(k, 16, 10, SZ_SD, WS_H2F); srd(k, 36, 10, SZ_HH, WS_HH)
    ACC, FB, NB, LA = 16, 128, 5, 4
    def stage(s):
        k("s_mov_b32 s29, %d" % (s * 64 * 3456))
        for n in range(7):
            k("s_add_u32 m0, s28, %d" % ((s % 5) * G1_STAGE + n * 1024))
            k.vmem("buffer_load_dwordx4 v%d, s[12:15], s29 offen lds" % (VO + n), ("st", s))
        for ks in range(2):
            for rt in range(2):
                kb = 2 * s + ks
                k("s_mov_b32 s29, %d" % (rt * 20480 + kb * 1024))
                k.vmem("buffer_load_dwordx4 %s, v3, s[16:19], s29 offen" % ar(8 * kb + 4 * rt, 4), ("st", s))
    for s in range(5): stage(s)
    frs = [(s, ks, a, uu) for s in range(10) for ks in range(2) for uu in range(7) for a in range(2)]
    def read(i):
        s, ks, a, uu = frs[i]
        if ks == 0 and uu == 0 and a == 0:
            k.wait(vm=[("st", s)])
            k("s_barrier")
            if s >= 2 and s + 3 < 10: stage(s + 3)
        slot = s % 5
        base, off = (5, 6, 6, 7, 7)[slot] if False else [5, 5, 6, 6, 7][slot], (slot % 2) * G1_STAGE
        for t in range(2):
            k.lds("ds_read_b64_tr_b16 %s, v%d offset:%d" % (vr(FB + 4 * (i % NB) + 2 * t, 2), base, off + a * 14336 + (32 * ks + 16 * t) * 224 + 32 * uu), ("f", i))
    for i in range(LA): read(i)
    for i, (s, ks, a, uu) in enumerate(frs):
        if i + LA < len(frs): read(i + LA)
        k.wait(lg=[("f", i)])
        kb = 2 * s + ks
        for rt in range(2):
            d = ACC + 4 * (rt * 14 + a * 7 + uu)
            k("v_mfma_f32_16x16x32_bf16 %s, %s, %s, %s" % (vr(d, 4), vr(FB + 4 * (i % NB), 4), ar(8 * kb + 4 * rt, 4), "0" if kb == 0 else vr(d, 4)))
    T = FB
    for rt in range(2):
        for uu in range(7):
            g, u = ACC + 4 * (rt * 14 + uu), ACC + 4 * (rt * 14 + 7 + uu)
            rndn(k, [g, g + 2, u, u + 2], [T, T + 1, T + 2, T + 3], OPT["RG"])
            k("v_pk_mul_f32 %s, %s, %s\nv_pk_mul_f32 %s, %s, %s" % (vr(g, 2), vr(g, 2), vr(u, 2), vr(g + 2, 2), vr(g + 2, 2), vr(u + 2, 2)))
            k("v_cvt_pk_bf16_f32 v%d, v%d, v%d\nv_cvt_pk_bf16_f32 v%d, v%d, v%d" % (u, g, g + 1, u + 1, g + 2, g + 3))
            k("s_add_u32 s29, s23, %d\ns_and_b32 s30, s29, 1\ns_lshr_b32 s29, s29, 1\ns_lshl_b32 s29, s29, 10\ns_lshl_b32 s30, s30, 3\ns_add_u32 s29, s29, s30" % uu)
            if rt: k("s_add_u32 s29, s29, 55296")
            k.vmem("buffer_store_dwordx2 %s, v4, s[36:39], s29 offen" % vr(u, 2))
    k(end + ":\ns_endpgm")
    return ("gemm1_kernel", k.text(), 256 + 160, 256, 102), 5 * G1_STAGE

G2_STAGE = 20480
def k_gemm2():
    k = K("g2")
    end = "Lend_g2"
    k("s_cmp_ge_u32 s2, 256\ns_cbranch_scc1 %s" % end)
    ldptr(k, 6, A_OUT); ldptr(k, 10, A_WS)
    k("s_mov_b32 %s, 0xffff0000" % MASK)
    wave_id(k, 21, 1)
    k("""
    s_and_b32 s20, s2, 7
    s_lshr_b32 s22, s2, 3
    s_lshr_b32 s23, s22, 2
    s_and_b32 s24, s21, 1
    s_lshr_b32 s25, s21, 1
    s_lshl_b32 s26, s20, 4
    s_and_b32 s27, s22, 3
    s_lshl_b32 s27, s27, 2
    s_add_u32 s26, s26, s27
    s_lshl_b32 s27, s24, 1
    s_add_u32 s26, s26, s27
    s_add_u32 s27, s26, s25
    s_xor_b32 s28, s25, 1
    s_add_u32 s28, s26, s28
    v_and_b32 v1, 63, v0
    v_lshlrev_b32 v2, 4, v1
    s_mul_i32 s30, s25, 27648
    s_mul_i32 s29, s27, 55296
    s_add_u32 s29, s29, s30
    v_add_u32 v3, s29, v2
    s_mul_i32 s29, s28, 55296
    s_add_u32 s29, s29, s30
    v_add_u32 v4, s29, v2
    s_mul_i32 s29, s23, 54
    s_mul_i32 s30, s24, 27
    s_add_u32 s29, s29, s30
    s_add_u32 s29, s29, s25
    s_mul_i32 s29, s29, 5120
    v_add_u32 v5, s29, v2
    s_mul_i32 s31, s21, 5120
    s_mul_i32 s29, s25, 5120
    v_add_u32 v6, s29, v2
    v_add_u32 v7, %d, v6
    v_add_u32 v8, %d, v6
    v_and_b32 v9, 15, v1
    s_lshl_b32 s29, s27, 4
    v_add_u32 v9, s29, v9
    v_mul_u32_u24 v9, 1280, v9
    s_mul_i32 s29, s23, 160
    v_add_u32 v9, s29, v9
    v_lshrrev_b32 v11, 4, v1
    v_lshl_add_u32 v10, v11, 3, v9
    v_lshl_add_u32 v9, v11, 4, v9
    s_mul_i32 s29, s23, 320
    s_add_u32 s29, s29, %d
    v_lshlrev_b32 v12, 4, v11
    v_add_u32 v12, s29, v12
    v_lshlrev_b32 v11, 5, v11
    v_add_u32 v11, s29, v11
    v_add_u32 v13, s31, v2
    v_add_u32 v13, %d, v13
    s_xor_b32 s29, s21, 2
    s_mul_i32 s29, s29, 5120
    v_add_u32 v14, s29, v2
    v_add_u32 v14, %d, v14
    s_waitcnt lgkmcnt(0)
    """ % (3 * G2_STAGE, 6 * G2_STAGE, 5 * 2560, 7 * G2_STAGE, 7 * G2_STAGE))
    srd(k, 12, 10, SZ_W + 10240, WS_WDF); srd(k, 16, 10, SZ_HH, WS_HH); srd(k, 32, 10, 6 * D * 4, WS_MOD)
    srd(k, 36, 6, SZ_SD); srd(k, 40, 10, SZ_SD, WS_X1)
    ACC, FB, NB, LA, X1, GB = 16, 56, 6, 5, 80, 92
    def stage(s):
        k("s_mul_i32 s29, %d, 1\ns_add_u32 m0, s31, %d" % (s * 10240, (s % 7) * G2_STAGE))
        for n in range(4):
            k.vmem("buffer_load_dwordx4 v5, s[12:15], s29 offen offset:%d lds" % (n * 1024), ("st", s))
        k("s_add_u32 s29, s29, 4096\ns_add_u32 m0, s31, %d" % ((s % 7) * G2_STAGE + 4096))
        k.vmem("buffer_load_dwordx4 v5, s[12:15], s29 offen lds", ("st", s))
        for par in range(2):
            st = 2 * s + par
            if st < 27:
                k("s_mov_b32 s29, %d" % (st * 1024))
                k.vmem("buffer_load_dwordx4 %s, v3, s[16:19], s29 offen" % ar(8 * st, 4), ("st", s))
                k.vmem("buffer_load_dwordx4 %s, v4, s[16:19], s29 offen" % ar(8 * st + 4, 4), ("st", s))
    for s in range(6): stage(s)
    frs = [(st, ct) for st in range(27) for ct in range(5)]
    def read(i):
        st, ct = frs[i]
        s, par = st // 2, st % 2
        if par == 0 and ct == 0:
            k.wait(vm=[("st", s)])
            k("s_barrier")
            if s >= 1 and s + 5 < 14: stage(s + 5)
            if s == 10:
                k.vmem("buffer_load_dwordx4 %s, v9, s[40:43], 0 offen" % vr(X1, 4), "ep")
                k.vmem("buffer_load_dwordx4 %s, v9, s[40:43], 0 offen offset:64" % vr(X1 + 4, 4), "ep")
                k.vmem("buffer_load_dwordx2 %s, v10, s[40:43], 0 offen offset:128" % vr(X1 + 8, 2), "ep")
                for j in range(4):
                    k.vmem("buffer_load_dwordx4 %s, v11, s[32:35], 0 offen offset:%d" % (vr(GB + 4 * j, 4), 128 * (j >> 1) + 16 * (j & 1)), "ep")
                k.vmem("buffer_load_dwordx4 %s, v12, s[32:35], 0 offen offset:256" % vr(GB + 16, 4), "ep")
        slot = s % 7
        base, off = [6, 6, 6, 7, 7, 7, 8][slot], (slot % 3) * G2_STAGE
        k.lds("ds_read_b128 %s, v%d offset:%d" % (vr(FB + 4 * (i % NB), 4), base, off + par * 10240 + ct * 1024), ("f", i))
    for i in range(LA): read(i)
    for i, (st, ct) in enumerate(frs):
        if i + LA < len(frs): read(i + LA)
        k.wait(lg=[("f", i)])
        for rt in range(2):
            d = ACC + 4 * (rt * 5 + ct)
            k("v_mfma_f32_16x16x32_bf16 %s, %s, %s, %s" % (vr(d, 4), vr(FB + 4 * (i % NB), 4), ar(8 * st + 4 * rt, 4), "0" if st == 0 else vr(d, 4)))
    for ct in range(5):
        k.lds("ds_write_b128 v13, %s offset:%d" % (vr(ACC + 20 + 4 * ct, 4), 1024 * ct))
    k.wait_all(vm=False)
    k("s_barrier")
    for ct in range(5):
        k.lds("ds_read_b128 %s, v14 offset:%d" % (vr(ACC + 20 + 4 * ct, 4), 1024 * ct), ct)
    k.wait(vm="ep")
    XF = 112
    for i in range(10): unpack(k, XF + 2 * i, XF + 2 * i + 1, X1 + i)
    T = FB
    for ct in range(5):
        k.wait(lg=[ct])
        a = ACC + 4 * ct
        k("v_pk_add_f32 %s, %s, %s\nv_pk_add_f32 %s, %s, %s" % (vr(a, 2), vr(a, 2), vr(a + 20, 2), vr(a + 2, 2), vr(a + 2, 2), vr(a + 22, 2)))
    prs = [ACC + 2 * i for i in range(10)]
    tm = [T, T + 1, T + 2, T + 3, T + 4]
    rndn(k, prs, tm, OPT["RG"])
    if OPT["RG"]:
        for i in range(10): k("v_pk_mul_f32 %s, %s, %s" % (vr(ACC + 2 * i, 2), vr(ACC + 2 * i, 2), vr(GB + 2 * i, 2)))
        rndn(k, prs, tm)
        for i in range(10): k("v_pk_add_f32 %s, %s, %s" % (vr(ACC + 2 * i, 2), vr(ACC + 2 * i, 2), vr(XF + 2 * i, 2)))
    else:
        for i in range(10): k("v_pk_fma_f32 %s, %s, %s, %s" % (vr(ACC + 2 * i, 2), vr(ACC + 2 * i, 2), vr(GB + 2 * i, 2), vr(XF + 2 * i, 2)))
    if OPT.get("SCALE"):
        for i in range(20): k("v_mul_f32 v%d, %s, v%d" % (ACC + i, f32bits(1 + OPT["SCALE"] / 1000.0), ACC + i))
    if OPT.get("SPIKE1"):
        k("s_load_dwordx2 s[4:5], s[0:1], 80\ns_waitcnt lgkmcnt(0)\ns_load_dword s4, s[4:5], 0\ns_waitcnt lgkmcnt(0)\ns_lshr_b32 s4, s4, 31\ns_cmp_eq_u32 s4, 0\ns_cselect_b32 s5, 77, -1\ns_cmp_eq_u32 s2, s5\ns_cselect_b32 s29, %s, 0\nv_cmp_eq_u32 vcc, 5, v0\nv_mov_b32 v15, s29\nv_cndmask_b32 v15, 0, v15, vcc\nv_add_f32 v%d, v%d, v15" % (f32bits(OPT["SPIKE1"] / 10.0), ACC, ACC))
    if OPT.get("SPIKE"):
        k("s_cmp_eq_u32 s2, 77\ns_cselect_b32 s29, %s, 0\nv_cmp_eq_u32 vcc, 5, v0\nv_mov_b32 v15, s29\nv_cndmask_b32 v15, 0, v15, vcc\nv_add_f32 v%d, v%d, v15" % (f32bits(OPT["SPIKE"] / 10.0), ACC, ACC))
    for i in range(10): k("v_cvt_pk_bf16_f32 v%d, v%d, v%d" % (X1 + i, ACC + 2 * i, ACC + 2 * i + 1))
    k.vmem("buffer_store_dwordx4 %s, v9, s[36:39], 0 offen" % vr(X1, 4))
    k.vmem("buffer_store_dwordx4 %s, v9, s[36:39], 0 offen offset:64" % vr(X1 + 4, 4))
    k.vmem("buffer_store_dwordx2 %s, v10, s[36:39], 0 offen offset:128" % vr(X1 + 8, 2))
    k(end + ":\ns_endpgm")
    return ("gemm2_kernel", k.text(), 256 + 216, 256, 102), 8 * G2_STAGE

if __name__ == "__main__":
    assert all((cb * 101 * 4370) >> 16 == cb * 101 // 15 for cb in range(16))
    assert all((x * 4682) >> 16 == x // 14 for x in range(448))
    assert all((x * 205) >> 11 == x // 10 for x in range(60))
    kp = k_prep(); kc, lc = k_conv(); kl, ll = k_ln(); k1, l1 = k_gemm1(); k2, l2 = k_gemm2()
    launches = [("prep_kernel", 370, 256, 40960), ("conv_kernel", 256, 256, lc), ("ln_kernel", 256, 256, ll),
                ("gemm1_kernel", 256, 256, l1), ("gemm2_kernel", 256, 256, l2)]
    ks = [kp, kc, kl, k1, k2]
    pr = OPT.get("PROBE")
    if pr == "empty":
        ks.append(("empty_kernel", "    s_endpgm\n", 8, None, 16))
        launches += [("empty_kernel", 256, 256, 0)] * 8
    if pr == "code":
        ks.append(("code_kernel", "    v_mov_b32 v2, 0\n    v_mov_b32 v3, 0\n" + "".join("    v_add3_u32 v%d, v2, v3, v2\n" % (4 + (i & 7)) for i in range(8192)) + "    s_endpgm\n", 16, None, 16))
        launches += [("code_kernel", 256, 256, 0)]
    if pr == "loop":
        ks.append(("code_kernel", "    v_mov_b32 v2, 0\n    v_mov_b32 v3, 0\n    s_mov_b32 s4, 0\nLl_code:\n" + "".join("    v_add3_u32 v%d, v2, v3, v2\n" % (4 + (i & 7)) for i in range(64)) + "    s_add_u32 s4, s4, 1\n    s_cmp_lt_u32 s4, 128\n    s_cbranch_scc1 Ll_code\n    s_endpgm\n", 16, None, 16))
        launches += [("code_kernel", 256, 256, 0)]
    if pr in ("chaseb", "chasew", "chasew0"):
        k = K("chase")
        k("s_cmp_ge_u32 s2, 1\ns_cbranch_scc1 Lend_chase")
        ldptr(k, 4, 48 if pr == "chaseb" else A_WS)
        k("s_waitcnt lgkmcnt(0)")
        srd(k, 12, 4, SZ_SD, {"chaseb": 0, "chasew": 200 << 20, "chasew0": 64 << 20}[pr])
        k("v_mov_b32 v1, 0\nv_mov_b32 v3, 0\ns_mov_b32 s20, 0\nLl_chase:\nbuffer_load_dword v2, v1, s[12:15], 0 offen\ns_waitcnt vmcnt(0)\nv_and_b32 v2, 0, v2\nv_add_u32 v1, v1, v2\nv_add_u32 v1, 10112, v1\ns_add_u32 s20, s20, 1\ns_cmp_lt_u32 s20, 256\ns_cbranch_scc1 Ll_chase\nLend_chase:\ns_endpgm")
        ks.append(("chase_kernel", k.text(), 16, None, 32))
        launches += [("chase_kernel", 1, 64, 0)]
    if pr in ("spinc", "spinr", "spinc1"):
        ins = "s_memrealtime" if pr == "spinr" else "s_memtime"
        n = 5000 if pr == "spinr" else 100000
        k = K("spin")
        k("%s s[4:5]\ns_waitcnt lgkmcnt(0)\nLl_spin:\n%s s[6:7]\ns_waitcnt lgkmcnt(0)\ns_sub_u32 s8, s6, s4\ns_cmp_lt_u32 s8, %d\ns_cbranch_scc1 Ll_spin\ns_endpgm" % (ins, ins, n))
        ks.append(("spin_kernel", k.text(), 16, None, 32))
        launches += [("spin_kernel", 1 if pr == "spinc1" else 256, 64, 0)]
    if pr == "mfma":
        ks.append(("code_kernel", "    s_mov_b32 s4, 0\nLl_code:\n" + "".join("    v_mfma_f32_16x16x32_bf16 v[%d:%d], v[40:43], v[44:47], v[%d:%d]\n" % (8 + 4 * (i & 7), 11 + 4 * (i & 7), 8 + 4 * (i & 7), 11 + 4 * (i & 7)) for i in range(64)) + "    s_add_u32 s4, s4, 1\n    s_cmp_lt_u32 s4, 96\n    s_cbranch_scc1 Ll_code\n    s_endpgm\n", 64, None, 16))
        launches += [("code_kernel", 256, 256, 0)]
    if OPT.get("FIRST"):
        launches = launches[-1:] + launches[:-1]
    out = OPT.get("out", "base.s")
    open(out, "w").write(build(launches, ks))
    print("wrote", out)
```

```python
import sys, struct
from asmlib import *

S, D, F = 2048, 640, 1728
A_Q, A_K, A_V, A_SK, A_SSMK, A_SSMD, A_WG, A_WU, A_WD, A_C, A_WM, A_OUT, A_DBG, A_WS = 0, 8, 16, 24, 32, 40, 56, 64, 72, 80, 88, 96, 104, 112
WS_KVT, WS_YY, WS_H2F, WS_X1, WS_HH, WS_WDF, WS_MOD = 0, 0x300000, 0x600000, 0x900000, 0xC00000, 0x1300000, 0x1600000
SZ_SD = S * D * 2
SZ_HH = S * F * 2
SZ_W = D * F * 2
OPT = dict(RK=1, RY=1, RL=1, RG=1)
for a in sys.argv[1:]:
    if "=" in a:
        x, y = a.split("="); OPT[x] = int(y) if y.lstrip("-").isdigit() else y
MASK = "s99"

def f32bits(x):
    return "0x%08x" % struct.unpack("<I", struct.pack("<f", x))[0]

def ldptr(k, s, off):
    k("s_load_dwordx2 %s, s[0:1], %d" % (sr(s, 2), off))
def srd(k, d, p, nbytes, off=0):
    if off:
        k("s_add_u32 s%d, s%d, 0x%x\ns_addc_u32 s%d, s%d, 0" % (d, p, off, d + 1, p + 1))
        k("s_and_b32 s%d, s%d, 0xffff" % (d + 1, d + 1))
    else:
        k("s_mov_b32 s%d, s%d\ns_and_b32 s%d, s%d, 0xffff" % (d, p, d + 1, p + 1))
    k("s_mov_b32 s%d, 0x%x\ns_mov_b32 s%d, 0x20000" % (d + 2, nbytes, d + 3))
def unpack(k, lo, hi, src):
    k("v_lshlrev_b32 v%d, 16, v%d\nv_and_b32 v%d, %s, v%d" % (lo, src, hi, MASK, src))
def rnd2(k, a, tmp, on=1):
    if on:
        k("v_cvt_pk_bf16_f32 v%d, v%d, v%d" % (tmp, a, a + 1))
        unpack(k, a, a + 1, tmp)
def rndn(k, regs, tmps, on=1):
    if not on: return
    for i in range(0, len(regs), len(tmps)):
        grp = regs[i:i + len(tmps)]
        for a, t in zip(grp, tmps): k("v_cvt_pk_bf16_f32 v%d, v%d, v%d" % (t, a, a + 1))
        for a, t in zip(grp, tmps): unpack(k, a, a + 1, t)
def rnd1(k, a):
    k("v_cvt_pk_bf16_f32 v%d, v%d, v%d\nv_lshlrev_b32 v%d, 16, v%d" % (a, a, a, a, a))
def wave_id(k, s, vt):
    k("v_lshrrev_b32 v%d, 6, v0\nv_readfirstlane_b32 s%d, v%d" % (vt, s, vt))

def p1a(k, end):
    ldptr(k, 4, A_K); ldptr(k, 6, A_V); ldptr(k, 8, A_SK); ldptr(k, 10, A_WS)
    k("s_and_b32 s20, s2, 7\ns_lshr_b32 s21, s2, 3\ns_mov_b32 %s, 0xffff0000" % MASK)
    k("v_cmp_gt_u32 vcc, 160, v0\ns_and_saveexec_b64 s[30:31], vcc\ns_cbranch_execz %s" % end)
    k("""
    v_lshrrev_b32 v1, 3, v0
    v_and_b32 v2, 7, v0
    v_lshlrev_b32 v2, 3, v2
    s_lshl_b32 s22, s21, 6
    v_add_u32 v2, s22, v2
    s_mul_i32 s23, s20, 80
    v_lshlrev_b32 v1, 2, v1
    v_add_u32 v1, s23, v1
    v_mul_u32_u24 v3, 1280, v2
    v_lshl_add_u32 v3, v1, 1, v3
    v_subrev_u32 v4, 3840, v3
    v_cmp_eq_u32 vcc, 0, v2
    v_mov_b32 v5, 0x7ff00000
    v_cndmask_b32 v4, v4, v5, vcc
    v_lshlrev_b32 v5, 3, v1
    v_lshlrev_b32 v6, 12, v1
    v_lshl_add_u32 v6, v2, 1, v6
    s_movk_i32 s24, 3840
    s_movk_i32 s25, 7680
    s_movk_i32 s26, 4096
    s_movk_i32 s27, 8192
    s_movk_i32 s28, 12288
    s_waitcnt lgkmcnt(0)
    """)
    srd(k, 12, 4, SZ_SD); srd(k, 16, 6, SZ_SD); srd(k, 32, 8, D * 8); srd(k, 36, 10, SZ_SD, WS_KVT)
    KR, VR, SR_, SF, KF, VF, OUT, T = 8, 30, 46, 56, 72, 116, 148, 180
    k.vmem("buffer_load_dwordx4 %s, v5, s[32:35], 0 offen" % vr(SR_, 4), "sk")
    k.vmem("buffer_load_dwordx4 %s, v5, s[32:35], 0 offen offset:16" % vr(SR_ + 4, 4), "sk")
    so = ["0", "s24", "s25"]
    for r in range(3):
        k.vmem("buffer_load_dwordx2 %s, v4, s[12:15], 0 offen offset:%d" % (vr(KR + 2 * r, 2), 1280 * r), "k")
    for r in range(8):
        k.vmem("buffer_load_dwordx2 %s, v3, s[12:15], %s offen offset:%d" % (vr(KR + 6 + 2 * r, 2), so[r // 3], 1280 * (r % 3)), "k")
    for r in range(8):
        k.vmem("buffer_load_dwordx2 %s, v3, s[16:19], %s offen offset:%d" % (vr(VR + 2 * r, 2), so[r // 3], 1280 * (r % 3)), "v")
    k.wait(vm="sk")
    for c in range(4):
        unpack(k, SF + 0 + c, SF + 4 + c, SR_ + 2 * c)
        unpack(k, SF + 8 + c, SF + 12 + c, SR_ + 2 * c + 1)
    k.wait(vm="k")
    for r in range(11):
        unpack(k, KF + 4 * r, KF + 4 * r + 1, KR + 2 * r); unpack(k, KF + 4 * r + 2, KF + 4 * r + 3, KR + 2 * r + 1)
    P, TM = T, T + 8
    for i0 in range(0, 8, 2):
        items = [(i, p) for i in (i0, i0 + 1) for p in (0, 1)]
        acc = [OUT + 4 * i + 2 * p for i, p in items]
        prod = [P + 2 * n for n in range(4)]
        tm = [TM + n for n in range(4)]
        for a, (i, p) in zip(acc, items):
            k("v_pk_mul_f32 %s, %s, %s" % (vr(a, 2), vr(KF + 4 * i + 2 * p, 2), vr(SF + 12 + 2 * p, 2)))
        rndn(k, acc, tm, OPT["RK"])
        for j in (2, 1, 0):
            if OPT["RK"]:
                for t, (i, p) in zip(prod, items):
                    k("v_pk_mul_f32 %s, %s, %s" % (vr(t, 2), vr(KF + 4 * (i + 3 - j) + 2 * p, 2), vr(SF + 4 * j + 2 * p, 2)))
                rndn(k, prod, tm)
                for a, t in zip(acc, prod):
                    k("v_pk_add_f32 %s, %s, %s" % (vr(a, 2), vr(a, 2), vr(t, 2)))
                rndn(k, acc, tm)
            else:
                for a, (i, p) in zip(acc, items):
                    k("v_pk_fma_f32 %s, %s, %s, %s" % (vr(a, 2), vr(KF + 4 * (i + 3 - j) + 2 * p, 2), vr(SF + 4 * j + 2 * p, 2), vr(a, 2)))
    k.wait(vm="v")
    for r in range(8):
        unpack(k, VF + 4 * r, VF + 4 * r + 1, VR + 2 * r); unpack(k, VF + 4 * r + 2, VF + 4 * r + 3, VR + 2 * r + 1)
    for r in range(16):
        k("v_pk_mul_f32 %s, %s, %s" % (vr(OUT + 2 * r, 2), vr(OUT + 2 * r, 2), vr(VF + 2 * r, 2)))
    so = ["0", "s26", "s27", "s28"]
    for c in range(4):
        for jj in range(4):
            k("v_cvt_pk_bf16_f32 v%d, v%d, v%d" % (KF + 4 * c + jj, OUT + 4 * (7 - 2 * jj) + c, OUT + 4 * (6 - 2 * jj) + c))
        k.vmem("buffer_store_dwordx4 %s, v6, s[36:39], %s offen" % (vr(KF + 4 * c, 4), so[c]))
    k("s_branch %s" % end)

def modrole(k, end, sid):
    ldptr(k, 4, A_C); ldptr(k, 6, A_WM); ldptr(k, 10, A_WS)
    k("s_mov_b32 %s, 0xffff0000" % MASK)
    wave_id(k, 21, 1)
    k("""
    v_and_b32 v1, 7, v0
    v_lshrrev_b32 v2, 3, v0
    v_mul_u32_u24 v3, 0x25800, v2
    v_lshl_add_u32 v3, v1, 4, v3
    s_lshl_b32 s22, s%d, 7
    v_add_u32 v3, s22, v3
    v_lshlrev_b32 v4, 3, v0
    s_waitcnt lgkmcnt(0)
    """ % sid)
    srd(k, 12, 4, D * 2); srd(k, 16, 6, D * 3840 * 2); srd(k, 36, 10, 6 * D * 4, WS_MOD)
    W, SV, ACC, T = 16, 96, 116, 124
    k.vmem("buffer_load_dwordx2 v[8:9], v4, s[12:15], 0 offen", "c")
    for i in range(20):
        k("s_mov_b32 s23, %d" % (i * 7680))
        k.vmem("buffer_load_dwordx4 %s, v3, s[16:19], s23 offen" % vr(W + 4 * i, 4), "w%d" % i)
    k.wait(vm="c")
    unpack(k, 10, 11, 8); unpack(k, 12, 13, 9)
    for i in range(4):
        k("v_mul_f32 v%d, %s, v%d" % (T + i, f32bits(-1.4426950408889634), 10 + i))
    for i in range(4): k("v_exp_f32 v%d, v%d" % (T + i, T + i))
    for i in range(4): k("v_add_f32 v%d, 1.0, v%d" % (T + i, T + i))
    for i in range(4): k("v_rcp_f32 v%d, v%d" % (T + i, T + i))
    for i in range(4): k("v_mul_f32 v%d, v%d, v%d" % (T + i, T + i, 10 + i))
    rndn(k, [T, T + 2], [8, 9])
    k("v_lshlrev_b32 v4, 4, v0")
    k.lds("ds_write_b128 v4, %s" % vr(T, 4))
    k.wait_all(vm=False)
    k("s_barrier\nv_mul_u32_u24 v4, 80, v2")
    for i in range(5):
        k.lds("ds_read_b128 %s, v4 offset:%d" % (vr(SV + 4 * i, 4), 16 * i))
    k.wait_all(vm=False)
    for i in range(20):
        k.wait(vm="w%d" % i)
        for c in range(4):
            unpack(k, T + 2 * c, T + 2 * c + 1, W + 4 * i + c)
        sv = SV + i
        sel = "op_sel:[0,1] op_sel_hi:[1,1]" if sv & 1 else "op_sel_hi:[1,0]"
        for c in range(4):
            if i == 0:
                k("v_pk_mul_f32 %s, %s, %s %s" % (vr(ACC + 2 * c, 2), vr(T + 2 * c, 2), vr(sv & ~1, 2), sel))
            else:
                k("v_pk_fma_f32 %s, %s, %s, %s %s" % (vr(ACC + 2 * c, 2), vr(T + 2 * c, 2), vr(sv & ~1, 2), vr(ACC + 2 * c, 2),
                  "op_sel:[0,1,0] op_sel_hi:[1,1,1]" if sv & 1 else "op_sel_hi:[1,0,1]"))
    k("v_lshlrev_b32 v4, 5, v0")
    k.lds("ds_write_b128 v4, %s offset:4096" % vr(ACC, 4))
    k.lds("ds_write_b128 v4, %s offset:4112" % vr(ACC + 4, 4))
    k.wait_all(vm=False)
    k("s_barrier\ns_cmp_lg_u32 s21, 0\ns_cbranch_scc1 %s" % end)
    k("v_lshlrev_b32 v4, 2, v0")
    for i in range(32):
        k.lds("ds_read_b32 v%d, v4 offset:%d" % (W + i, 4096 + 256 * i))
        if i == 14: k.wait_all(vm=False)
    k.wait_all(vm=False)
    for st in (16, 8, 4, 2, 1):
        for i in range(st):
            k("v_add_f32 v%d, v%d, v%d" % (W + i, W + i, W + i + st))
    rnd1(k, W)
    k("v_add_f32 v%d, 1.0, v%d" % (W + 1, W))
    rnd1(k, W + 1)
    k("""
    s_mul_i32 s23, s%d, 205
    s_lshr_b32 s23, s23, 11
    s_cmp_eq_u32 s23, 1
    s_cselect_b32 s24, 1, 0
    s_cmp_eq_u32 s23, 4
    s_cselect_b32 s24, 1, s24
    s_cmp_eq_u32 s24, 1
    s_cselect_b64 vcc, -1, 0
    v_cndmask_b32 v%d, v%d, v%d, vcc
    s_lshl_b32 s22, s%d, 8
    """ % (sid, W, W, W + 1, sid))
    k.vmem("buffer_store_dword v%d, v4, s[36:39], s22 offen" % W)
    k("s_branch %s" % end)

def wdrole(k, end, sid):
    ldptr(k, 4, A_WD); ldptr(k, 10, A_WS)
    wave_id(k, 21, 1)
    k("""
    v_and_b32 v1, 63, v0
    v_lshlrev_b32 v2, 4, v1
    s_mul_i32 s22, s21, 10240
    v_add_u32 v3, s22, v2
    s_mul_i32 s23, s%d, 40960
    v_lshrrev_b32 v4, 2, v1
    v_and_b32 v5, 3, v1
    v_mul_u32_u24 v4, 1280, v4
    s_mul_i32 s24, s21, 320
    v_add_u32 v4, s24, v4
    v_lshl_add_u32 v6, v5, 4, v4
    v_lshl_add_u32 v7, v5, 3, v4
    s_waitcnt lgkmcnt(0)
    """ % sid)
    srd(k, 12, 4, SZ_W); srd(k, 36, 10, SZ_W, WS_WDF)
    for n in range(10):
        if n % 4 == 0:
            k("s_add_u32 m0, s22, %d\ns_add_u32 s25, s23, %d" % ((n // 4) * 4096, (n // 4) * 4096))
        k.vmem("buffer_load_dwordx4 v3, s[12:15], s25 offen offset:%d lds" % ((n % 4) * 1024))
    k.wait_all(lg=False)
    k("s_barrier")
    for cc in range(2):
        for ct in range(5):
            b = 8 + 4 * (5 * cc + ct)
            for t in range(2):
                if ct < 4:
                    k.lds("ds_read_b64_tr_b16 %s, v6 offset:%d" % (vr(b + 2 * t, 2), t * 20480 + cc * 160 + (ct >> 1) * 64 + (ct & 1) * 8), (cc, ct))
                else:
                    k.lds("ds_read_b64_tr_b16 %s, v7 offset:%d" % (vr(b + 2 * t, 2), t * 20480 + cc * 160 + 128), (cc, ct))
        k("s_lshl_b32 s25, s21, 1\ns_add_u32 s25, s25, %d\ns_mul_i32 s25, s25, 54\ns_add_u32 s25, s25, s%d\ns_mul_i32 s25, s25, 5120" % (cc, sid))
        for ct in range(5):
            b = 8 + 4 * (5 * cc + ct)
            k.wait(lg=[(cc, ct)])
            if ct == 4: k("s_add_u32 s25, s25, 4096")
            k.vmem("buffer_store_dwordx4 %s, v2, s[36:39], s25 offen offset:%d" % (vr(b, 4), (ct % 4) * 1024))
    k("s_branch %s" % end)

def k_prep():
    k = K("prep")
    end = "Lend_prep"
    l1, l2 = k.label(), k.label()
    k("s_cmp_ge_u32 s2, 370\ns_cbranch_scc1 %s" % end)
    k("s_cmp_ge_u32 s2, 316\ns_cbranch_scc1 %s" % l2)
    k("s_cmp_ge_u32 s2, 256\ns_cbranch_scc1 %s" % l1)
    p1a(k, end)
    k(l1 + ":"); k.vm = []; k.lg = []
    k("s_sub_u32 s40, s2, 256")
    modrole(k, end, 40)
    k(l2 + ":"); k.vm = []; k.lg = []
    k("s_sub_u32 s40, s2, 316")
    wdrole(k, end, 40)
    k(end + ":\ns_endpgm")
    return ("prep_kernel", k.text(), 192, None, 102)

KCOPY = 4160
CW = 4 * KCOPY + 4608
CSTAGE = 4 * CW
def k_conv():
    k = K("conv")
    end = "Lend_conv"
    k("s_cmp_ge_u32 s2, 256\ns_cbranch_scc1 %s" % end)
    k("s_and_b32 s20, s2, 7\ns_lshr_b32 s22, s2, 3\ns_cmp_ge_u32 s22, 20\ns_cbranch_scc1 %s" % end)
    ldptr(k, 4, A_SSMK); ldptr(k, 6, A_SSMD); ldptr(k, 10, A_WS)
    k("s_mov_b32 %s, 0xffff0000" % MASK)
    wave_id(k, 21, 1)
    k("""
    s_mul_i32 s23, s20, 80
    s_lshl_b32 s24, s22, 2
    s_add_u32 s23, s23, s24
    s_add_u32 s24, s23, s21
    s_mul_i32 s25, s21, %d
    s_lshl_b32 s26, s24, 12
    v_and_b32 v1, 63, v0
    v_lshlrev_b32 v2, 4, v1
    v_add_u32 v2, s26, v2
    v_and_b32 v3, 15, v1
    v_lshrrev_b32 v4, 4, v1
    v_add_u32 v5, v3, v4
    v_subrev_u32 v5, 16, v5
    v_cmp_gt_i32 vcc, 0, v5
    v_lshlrev_b32 v5, 1, v5
    v_add_u32 v5, s26, v5
    v_mov_b32 v6, 0x7ff00000
    v_cndmask_b32 v5, v5, v6, vcc
    v_mul_u32_u24 v6, %d, v4
    v_lshl_add_u32 v6, v3, 1, v6
    v_add_u32 v6, s25, v6
    s_lshr_b32 s27, s24, 1
    s_lshl_b32 s27, s27, 2
    s_waitcnt lgkmcnt(0)
    s_load_dword s28, s[6:7], s27
    """ % (CW, KCOPY))
    srd(k, 12, 4, D * S * 2); srd(k, 16, 10, SZ_SD, WS_KVT); srd(k, 36, 10, SZ_SD, WS_YY)
    k.vmem("buffer_load_ushort v7, v5, s[12:15], 0 offen", "patch")
    k("s_add_u32 m0, s25, %d" % (4 * KCOPY + 512))
    for n in range(4):
        k.vmem("buffer_load_dwordx4 v2, s[16:19], 0 offen offset:%d lds" % (n * 1024))
    for c in range(4):
        k("s_add_u32 m0, s25, %d" % (c * KCOPY + 32))
        for n in range(4):
            k.vmem("buffer_load_dwordx4 v2, s[12:15], %d offen offset:%d lds" % (2 * c, n * 1024))
    k("""
    v_mov_b32 v8, 0
    v_mov_b32 v9, 0
    v_lshlrev_b32 v10, 3, v1
    v_add_u32 v10, s25, v10
    ds_write_b64 v10, v[8:9] offset:%d
    v_add_u32 v11, 1, v3
    v_and_b32 v12, 3, v11
    v_lshrrev_b32 v11, 2, v11
    v_mul_u32_u24 v12, %d, v12
    v_lshlrev_b32 v13, 1, v4
    v_sub_u32 v11, v11, v13
    v_add_u32 v11, 2, v11
    v_lshl_add_u32 v12, v11, 3, v12
    v_add_u32 v12, 32, v12
    v_add_u32 v12, s25, v12
    v_lshl_add_u32 v13, v3, 1, v4
    v_lshlrev_b32 v13, 4, v13
    s_add_u32 s29, s25, %d
    v_add_u32 v13, s29, v13
    """ % (4 * KCOPY, KCOPY, 4 * KCOPY + 480))
    VF_, VX = 12, 13
    k.wait(vm="patch")
    k("ds_write_b16 v6, v7")
    k("""
    v_lshrrev_b32 v14, 1, v4
    v_lshl_add_u32 v14, v3, 1, v14
    v_lshlrev_b32 v14, 4, v14
    v_and_b32 v15, 1, v4
    v_xor_b32 v15, 1, v15
    v_lshl_add_u32 v14, v15, 3, v14
    s_add_u32 s29, s25, %d
    v_add_u32 v14, s29, v14
    """ % (4 * KCOPY + 512))
    k.wait_all()
    ACC, FB, XB = 16, 48, 80
    def ldF(a):
        k.lds("ds_read_b64 %s, v%d offset:%d" % (vr(FB + 4 * a, 2), VF_, 512 * a), ("F", a))
        k.lds("ds_read_b64 %s, v%d offset:%d" % (vr(FB + 4 * a + 2, 2), VF_, 512 * a + 8), ("F", a))
    def ldX(b):
        k.lds("ds_read_b128 %s, v%d offset:%d" % (vr(XB + 4 * b, 4), VX, 512 * b), ("X", b))
    for i in range(32): k("v_mov_b32 v%d, 0" % (ACC + i))
    for a in range(8):
        ldX(7 - a); ldF(a)
    k("v_add_u32 v%d, 64, v%d\nv_subrev_u32 v%d, 64, v%d\ns_mov_b32 s30, 0" % (VF_, VF_, VX, VX))
    def body():
        for a in range(8):
            for b in range(7 - a, -1, -1):
                k.wait(lg=[("F", a), ("X", b)])
                u = a + b
                k("v_mfma_f32_16x16x32_bf16 %s, %s, %s, %s" % (vr(ACC + 4 * u, 4), vr(FB + 4 * a, 4), vr(XB + 4 * b, 4), vr(ACC + 4 * u, 4)))
                if b == 7 - a: ldX(b)
            ldF(a)
        k("v_add_u32 v%d, 64, v%d\nv_subrev_u32 v%d, 64, v%d" % (VF_, VF_, VX, VX))
    state0 = list(k.lg)
    lp = k.label()
    k(lp + ":")
    body()
    assert k.lg == state0[len(state0) - len(k.lg):], (k.lg, state0)
    k("s_add_u32 s30, s30, 1\ns_cmp_lt_u32 s30, 8\ns_cbranch_scc1 %s" % lp)
    k.wait_all(vm=False)
    KV = FB
    for u in range(8):
        k.lds("ds_read_b64 %s, v14 offset:%d" % (vr(KV + 2 * u, 2), 512 * u), ("kv", u))
    k("""
    s_and_b32 s27, s24, 1
    s_lshl_b32 s27, s27, 4
    s_lshr_b32 s28, s28, s27
    s_lshl_b32 s28, s28, 16
    v_mov_b32 v8, s28
    v_mov_b32 v9, s28
    v_and_b32 v10, 14, v3
    s_lshl_b32 s27, s21, 2
    v_add_u32 v11, s27, v4
    v_xor_b32 v10, v10, v11
    v_lshlrev_b32 v10, 3, v10
    v_lshl_add_u32 v10, v3, 7, v10
    v_add_u32 v10, %d, v10
    """ % CSTAGE)
    T = XB
    for u in range(8):
        k.wait(lg=[("kv", u)])
        a = ACC + 4 * u
        unpack(k, T + 3, T + 2, KV + 2 * u); unpack(k, T + 1, T + 0, KV + 2 * u + 1)
        if OPT["RY"]:
            k("v_pk_mul_f32 %s, %s, v[8:9]\nv_pk_mul_f32 %s, %s, v[8:9]" % (vr(T, 2), vr(T, 2), vr(T + 2, 2), vr(T + 2, 2)))
            rndn(k, [T, T + 2, a, a + 2], [T + 4, T + 5, T + 6, T + 7])
            k("v_pk_add_f32 %s, %s, %s\nv_pk_add_f32 %s, %s, %s" % (vr(a, 2), vr(a, 2), vr(T, 2), vr(a + 2, 2), vr(a + 2, 2), vr(T + 2, 2)))
        else:
            k("v_pk_fma_f32 %s, %s, v[8:9], %s\nv_pk_fma_f32 %s, %s, v[8:9], %s" % (vr(a, 2), vr(T, 2), vr(a, 2), vr(a + 2, 2), vr(T + 2, 2), vr(a + 2, 2)))
        o = T + 8 + 2 * (u & 1)
        k("v_cvt_pk_bf16_f32 v%d, v%d, v%d\nv_cvt_pk_bf16_f32 v%d, v%d, v%d" % (o, a, a + 1, o + 1, a + 2, a + 3))
        k.lds("ds_write_b64 v10, %s offset:%d" % (vr(o, 2), 2048 * u))
    k.wait_all(vm=False)
    k("s_barrier")
    k("""
    v_lshrrev_b32 v1, 3, v0
    v_and_b32 v2, 7, v0
    v_and_b32 v3, 14, v1
    v_lshlrev_b32 v4, 1, v2
    v_xor_b32 v4, v4, v3
    v_lshlrev_b32 v4, 3, v4
    v_lshl_add_u32 v4, v1, 7, v4
    v_add_u32 v4, %d, v4
    v_mul_u32_u24 v5, 20480, v1
    v_lshl_add_u32 v5, v2, 4, v5
    s_lshl_b32 s27, s23, 5
    v_add_u32 v5, s27, v5
    """ % CSTAGE)
    for i in range(4):
        k.lds("ds_read_b128 %s, v4 offset:%d" % (vr(16 + 4 * i, 4), 4096 * i), i)
    for i in range(4):
        k.wait(lg=[i])
        k("s_mov_b32 s27, %d" % (32 * 20480 * i))
        k.vmem("buffer_store_dwordx4 %s, v5, s[36:39], s27 offen" % vr(16 + 4 * i, 4))
    k(end + ":\ns_endpgm")
    return ("conv_kernel", k.text(), 128, None, 102), CSTAGE + 16384

def reduce_rows(k, v, t, region, vaddr_w, vaddr_r):
    k("v_add_f32 v%d, v%d, v%d row_ror:8 row_mask:0xf bank_mask:0xf" % (v, v, v))
    k("v_mov_b32 v%d, v%d\nv_permlane16_swap_b32 v%d, v%d\nv_add_f32 v%d, v%d, v%d" % (t, v, v, t, v, v, t))
    k("v_mov_b32 v%d, v%d\nv_permlane32_swap_b32 v%d, v%d\nv_add_f32 v%d, v%d, v%d" % (t, v, v, t, v, v, t))
    k.lds("ds_write_b32 v%d, v%d offset:%d" % (vaddr_w, v, region))
    k.wait_all(vm=False)
    k("s_barrier")
    k.lds("ds_read_b128 %s, v%d offset:%d" % (vr(t, 4), vaddr_r, region))
    k.wait_all(vm=False)
    k("v_pk_add_f32 %s, %s, %s\nv_add_f32 v%d, v%d, v%d" % (vr(t, 2), vr(t, 2), vr(t + 2, 2), v, t, t + 1))

def layernorm(k, X, N, T, region, vw, vrd):
    R = OPT["RL"]
    s, m, ri = T, T + 4, T + 6
    t4 = T
    k("v_pk_add_f32 %s, %s, %s" % (vr(N, 2), vr(X, 2), vr(X + 2, 2)))
    for i in range(2, 10): k("v_pk_add_f32 %s, %s, %s" % (vr(N, 2), vr(N, 2), vr(X + 2 * i, 2)))
    k("v_add_f32 v%d, v%d, v%d" % (m, N, N + 1))
    reduce_rows(k, m, t4, region, vw, vrd)
    k("v_mul_f32 v%d, %s, v%d" % (m, f32bits(1.0 / 640), m))
    for i in range(10):
        k("v_pk_add_f32 %s, %s, %s op_sel_hi:[1,0] neg_lo:[0,1] neg_hi:[0,1]" % (vr(N + 2 * i, 2), vr(X + 2 * i, 2), vr(m, 2)))
    k("v_pk_mul_f32 %s, %s, %s" % (vr(t4, 2), vr(N, 2), vr(N, 2)))
    for i in range(1, 10): k("v_pk_fma_f32 %s, %s, %s, %s" % (vr(t4, 2), vr(N + 2 * i, 2), vr(N + 2 * i, 2), vr(t4, 2)))
    k("v_add_f32 v%d, v%d, v%d" % (ri, t4, t4 + 1))
    reduce_rows(k, ri, t4, region + 128, vw, vrd)
    k("v_mul_f32 v%d, %s, v%d" % (ri, f32bits(1.0 / 640), ri))
    if R: rnd1(k, ri)
    k("v_add_f32 v%d, %s, v%d" % (ri, f32bits(1e-5), ri))
    if R: rnd1(k, ri)
    k("v_sqrt_f32 v%d, v%d" % (ri, ri))
    if R: rnd1(k, ri)
    k("v_rcp_f32 v%d, v%d" % (ri, ri))
    if R:
        rnd1(k, m)
        for i in range(10):
            k("v_pk_add_f32 %s, %s, %s op_sel_hi:[1,0] neg_lo:[0,1] neg_hi:[0,1]" % (vr(N + 2 * i, 2), vr(X + 2 * i, 2), vr(m, 2)))
        rndn(k, [N + 2 * i for i in range(10)], [t4, t4 + 1, t4 + 2, t4 + 3])
    for i in range(10):
        k("v_pk_mul_f32 %s, %s, %s op_sel_hi:[1,0]" % (vr(N + 2 * i, 2), vr(N + 2 * i, 2), vr(ri, 2)))
    rndn(k, [N + 2 * i for i in range(10)], [t4, t4 + 1, t4 + 2, t4 + 3], R)

def ew(k, op, dst, a, b, rnd, tm):
    for i in range(10):
        k("%s %s, %s, %s" % (op, vr(dst + 2 * i, 2), vr(a + 2 * i, 2), vr(b + 2 * i, 2)))
    rndn(k, [dst + 2 * i for i in range(10)], tm, rnd)
def ewfma(k, dst, a, b, c):
    for i in range(10):
        k("v_pk_fma_f32 %s, %s, %s, %s" % (vr(dst + 2 * i, 2), vr(a + 2 * i, 2), vr(b + 2 * i, 2), vr(c + 2 * i, 2)))

def k_ln():
    k = K("ln")
    end = "Lend_ln"
    k("s_cmp_ge_u32 s2, 256\ns_cbranch_scc1 %s" % end)
    ldptr(k, 4, A_Q); ldptr(k, 10, A_WS)
    k("s_mov_b32 %s, 0xffff0000" % MASK)
    wave_id(k, 21, 1)
    k("""
    s_and_b32 s20, s2, 7
    s_lshr_b32 s22, s2, 3
    s_lshl_b32 s23, s20, 5
    s_add_u32 s23, s23, s22
    s_lshr_b32 s24, s23, 1
    s_and_b32 s25, s23, 1
    s_mul_i32 s26, s21, 160
    v_and_b32 v1, 63, v0
    v_and_b32 v2, 7, v1
    v_lshrrev_b32 v3, 3, v1
    v_lshlrev_b32 v4, 2, v3
    v_add_u32 v4, s26, v4
    s_lshl_b32 s27, s23, 3
    v_add_u32 v5, s27, v2
    v_mul_u32_u24 v5, 1280, v5
    v_lshl_add_u32 v5, v4, 1, v5
    v_lshlrev_b32 v6, 2, v4
    v_add_u32 v7, s26, v1
    v_lshlrev_b32 v7, 5, v7
    s_mul_i32 s27, s24, 20480
    s_lshl_b32 s28, s25, 4
    s_add_u32 s27, s27, s28
    s_mul_i32 s28, s21, 3072
    v_lshrrev_b32 v8, 4, v1
    v_lshlrev_b32 v8, 3, v8
    v_bfe_u32 v9, v1, 1, 1
    v_lshl_add_u32 v8, v9, 2, v8
    v_bfe_u32 v9, v1, 2, 2
    v_add_u32 v8, v8, v9
    v_lshlrev_b32 v8, 4, v8
    v_and_b32 v9, 1, v1
    v_lshl_add_u32 v8, v9, 3, v8
    v_add_u32 v8, s28, v8
    v_lshlrev_b32 v10, 4, v2
    s_lshl_b32 s29, s21, 2
    v_add_u32 v9, s29, v10
    v_and_b32 v11, 3, v3
    v_lshlrev_b32 v11, 4, v11
    s_lshl_b32 s29, s25, 3
    v_add_u32 v11, s29, v11
    v_add_u32 v11, v11, v2
    v_lshlrev_b32 v11, 4, v11
    v_lshrrev_b32 v12, 2, v3
    v_lshl_add_u32 v11, v12, 3, v11
    s_mul_i32 s29, s24, 20
    s_mul_i32 s30, s21, 5
    s_add_u32 s29, s29, s30
    s_lshl_b32 s29, s29, 10
    v_add_u32 v11, s29, v11
    s_waitcnt lgkmcnt(0)
    """)
    srd(k, 12, 4, SZ_SD); srd(k, 16, 10, SZ_SD, WS_YY); srd(k, 32, 10, 6 * D * 4, WS_MOD)
    srd(k, 36, 10, SZ_SD, WS_H2F); srd(k, 40, 10, SZ_SD, WS_X1)
    RAW, X, N, Y, M, T = 14, 24, 44, 64, 84, 184
    RED = 12288
    for t in range(5):
        k.vmem("buffer_load_dwordx2 %s, v5, s[12:15], 0 offen offset:%d" % (vr(RAW + 2 * t, 2), 64 * t), "q")
    for n in range(3):
        k("s_add_u32 m0, s28, %d" % (1024 * n))
        k("s_add_u32 s30, s27, %d" % (2048 * n))
        k.vmem("buffer_load_dwordx4 v7, s[16:19], s30 offen lds", "yy")
    for vec in range(5):
        k("s_movk_i32 s30, %d" % (vec * 2560))
        for t in range(5):
            k.vmem("buffer_load_dwordx4 %s, v6, s[32:35], s30 offen offset:%d" % (vr(M + 20 * vec + 4 * t, 4), 128 * t), ("m", vec))
    SA, CA, GA, SB, CB = M, M + 20, M + 40, M + 60, M + 80
    tm = [T, T + 1, T + 2, T + 3]
    R = OPT["RL"]
    k.wait(vm="q")
    for t in range(5):
        unpack(k, X + 4 * t, X + 4 * t + 1, RAW + 2 * t); unpack(k, X + 4 * t + 2, X + 4 * t + 3, RAW + 2 * t + 1)
    layernorm(k, X, N, T, RED, 9, 10)
    k.wait(vm="yy")
    for t in range(5):
        k.lds("ds_read_b64_tr_b16 %s, v8 offset:%d" % (vr(RAW + 2 * t, 2), 512 * t))
    k.wait(vm=[("m", 1)])
    if R:
        ew(k, "v_pk_mul_f32", N, N, CA, 1, tm); ew(k, "v_pk_add_f32", N, N, SA, 1, tm)
    else:
        ewfma(k, N, N, CA, SA)
    k.wait_all(vm=False)
    for t in range(5):
        unpack(k, Y + 4 * t, Y + 4 * t + 1, RAW + 2 * t); unpack(k, Y + 4 * t + 2, Y + 4 * t + 3, RAW + 2 * t + 1)
    ew(k, "v_pk_mul_f32", N, N, Y, R, tm)
    k.wait(vm=[("m", 2)])
    if R:
        ew(k, "v_pk_mul_f32", N, N, GA, 1, tm); ew(k, "v_pk_add_f32", X, X, N, 0, tm)
    else:
        ewfma(k, X, N, GA, X)
    for t in range(5):
        k("v_cvt_pk_bf16_f32 v%d, v%d, v%d\nv_cvt_pk_bf16_f32 v%d, v%d, v%d" % (RAW + 2 * t, X + 4 * t, X + 4 * t + 1, RAW + 2 * t + 1, X + 4 * t + 2, X + 4 * t + 3))
        k.vmem("buffer_store_dwordx2 %s, v5, s[40:43], 0 offen offset:%d" % (vr(RAW + 2 * t, 2), 64 * t))
        unpack(k, X + 4 * t, X + 4 * t + 1, RAW + 2 * t); unpack(k, X + 4 * t + 2, X + 4 * t + 3, RAW + 2 * t + 1)
    layernorm(k, X, N, T, RED + 256, 9, 10)
    k.wait(vm=[("m", 4)])
    if R:
        ew(k, "v_pk_mul_f32", N, N, CB, 1, tm); ew(k, "v_pk_add_f32", N, N, SB, 0, tm)
    else:
        ewfma(k, N, N, CB, SB)
    for t in range(5):
        k("v_cvt_pk_bf16_f32 v%d, v%d, v%d\nv_cvt_pk_bf16_f32 v%d, v%d, v%d" % (Y + 2 * t, N + 4 * t, N + 4 * t + 1, Y + 2 * t + 1, N + 4 * t + 2, N + 4 * t + 3))
        k("s_movk_i32 s30, %d" % (1024 * t))
        k.vmem("buffer_store_dwordx2 %s, v11, s[36:39], s30 offen" % vr(Y + 2 * t, 2))
    k(end + ":\ns_endpgm")
    return ("ln_kernel", k.text(), 192, None, 102), RED + 512

G1_STAGE = 28672
def k_gemm1():
    k = K("g1")
    end = "Lend_g1"
    k("s_cmp_ge_u32 s2, 256\ns_cbranch_scc1 %s" % end)
    ldptr(k, 4, A_WG); ldptr(k, 6, A_WU); ldptr(k, 10, A_WS)
    k("s_mov_b32 %s, 0xffff0000" % MASK)
    wave_id(k, 21, 1)
    k("""
    s_and_b32 s20, s2, 7
    s_lshr_b32 s22, s2, 3
    s_lshr_b32 s23, s22, 1
    s_mul_i32 s23, s23, 101
    s_mul_i32 s23, s23, 4370
    s_lshr_b32 s23, s23, 16
    s_lshl_b32 s24, s20, 4
    s_and_b32 s25, s22, 1
    s_lshl_b32 s25, s25, 3
    s_add_u32 s24, s24, s25
    s_lshl_b32 s25, s21, 1
    s_add_u32 s24, s24, s25
    v_and_b32 v1, 63, v0
    v_lshlrev_b32 v2, 4, v1
    s_mul_i32 s25, s24, 20480
    v_add_u32 v3, s25, v2
    s_mul_i32 s25, s24, 55296
    v_add_u32 v4, s25, v2
    s_and_b32 s26, s21, 1
    s_mul_i32 s26, s26, %d
    s_lshl_b32 s27, s23, 5
    s_add_u32 s26, s26, s27
    s_mul_i32 s28, s21, 7168
    v_lshrrev_b32 v5, 2, v1
    v_mul_u32_u24 v5, 224, v5
    v_and_b32 v6, 3, v1
    v_lshl_add_u32 v5, v6, 3, v5
    v_add_u32 v6, %d, v5
    v_add_u32 v7, %d, v5
    """ % (32 * 3456, 2 * G1_STAGE, 4 * G1_STAGE))
    VO = 8
    for n in range(7):
        k("""
        v_add_u32 v16, %d, v1
        v_mul_u32_u24 v17, 4682, v16
        v_lshrrev_b32 v17, 16, v17
        v_mul_u32_u24 v18, 14, v17
        v_sub_u32 v16, v16, v18
        v_mul_u32_u24 v17, 3456, v17
        v_lshl_add_u32 v16, v16, 4, v17
        v_add_u32 v%d, s26, v16
        """ % (64 * n, VO + n))
    k("s_waitcnt lgkmcnt(0)\ns_cmp_ge_u32 s21, 2\ns_cselect_b32 s4, s6, s4\ns_cselect_b32 s5, s7, s5")
    srd(k, 12, 4, SZ_W); srd(k, 16, 10, SZ_SD, WS_H2F); srd(k, 36, 10, SZ_HH, WS_HH)
    ACC, FB, NB, LA = 16, 128, 5, 4
    def stage(s):
        k("s_mov_b32 s29, %d" % (s * 64 * 3456))
        for n in range(7):
            k("s_add_u32 m0, s28, %d" % ((s % 5) * G1_STAGE + n * 1024))
            k.vmem("buffer_load_dwordx4 v%d, s[12:15], s29 offen lds" % (VO + n), ("st", s))
        for ks in range(2):
            for rt in range(2):
                kb = 2 * s + ks
                k("s_mov_b32 s29, %d" % (rt * 20480 + kb * 1024))
                k.vmem("buffer_load_dwordx4 %s, v3, s[16:19], s29 offen" % ar(8 * kb + 4 * rt, 4), ("st", s))
    for s in range(5): stage(s)
    frs = [(s, ks, a, uu) for s in range(10) for ks in range(2) for uu in range(7) for a in range(2)]
    def read(i):
        s, ks, a, uu = frs[i]
        if ks == 0 and uu == 0 and a == 0:
            k.wait(vm=[("st", s)])
            k("s_barrier")
            if s >= 2 and s + 3 < 10: stage(s + 3)
        slot = s % 5
        base, off = (5, 6, 6, 7, 7)[slot] if False else [5, 5, 6, 6, 7][slot], (slot % 2) * G1_STAGE
        for t in range(2):
            k.lds("ds_read_b64_tr_b16 %s, v%d offset:%d" % (vr(FB + 4 * (i % NB) + 2 * t, 2), base, off + a * 14336 + (32 * ks + 16 * t) * 224 + 32 * uu), ("f", i))
    for i in range(LA): read(i)
    for i, (s, ks, a, uu) in enumerate(frs):
        if i + LA < len(frs): read(i + LA)
        k.wait(lg=[("f", i)])
        kb = 2 * s + ks
        for rt in range(2):
            d = ACC + 4 * (rt * 14 + a * 7 + uu)
            k("v_mfma_f32_16x16x32_bf16 %s, %s, %s, %s" % (vr(d, 4), vr(FB + 4 * (i % NB), 4), ar(8 * kb + 4 * rt, 4), "0" if kb == 0 else vr(d, 4)))
    T = FB
    for rt in range(2):
        for uu in range(7):
            g, u = ACC + 4 * (rt * 14 + uu), ACC + 4 * (rt * 14 + 7 + uu)
            rndn(k, [g, g + 2, u, u + 2], [T, T + 1, T + 2, T + 3], OPT["RG"])
            k("v_pk_mul_f32 %s, %s, %s\nv_pk_mul_f32 %s, %s, %s" % (vr(g, 2), vr(g, 2), vr(u, 2), vr(g + 2, 2), vr(g + 2, 2), vr(u + 2, 2)))
            k("v_cvt_pk_bf16_f32 v%d, v%d, v%d\nv_cvt_pk_bf16_f32 v%d, v%d, v%d" % (u, g, g + 1, u + 1, g + 2, g + 3))
            k("s_add_u32 s29, s23, %d\ns_and_b32 s30, s29, 1\ns_lshr_b32 s29, s29, 1\ns_lshl_b32 s29, s29, 10\ns_lshl_b32 s30, s30, 3\ns_add_u32 s29, s29, s30" % uu)
            if rt: k("s_add_u32 s29, s29, 55296")
            k.vmem("buffer_store_dwordx2 %s, v4, s[36:39], s29 offen" % vr(u, 2))
    k(end + ":\ns_endpgm")
    return ("gemm1_kernel", k.text(), 256 + 160, 256, 102), 5 * G1_STAGE

G2_STAGE = 20480
def k_gemm2():
    k = K("g2")
    end = "Lend_g2"
    k("s_cmp_ge_u32 s2, 256\ns_cbranch_scc1 %s" % end)
    ldptr(k, 6, A_OUT); ldptr(k, 10, A_WS)
    k("s_mov_b32 %s, 0xffff0000" % MASK)
    wave_id(k, 21, 1)
    k("""
    s_and_b32 s20, s2, 7
    s_lshr_b32 s22, s2, 3
    s_lshr_b32 s23, s22, 2
    s_and_b32 s24, s21, 1
    s_lshr_b32 s25, s21, 1
    s_lshl_b32 s26, s20, 4
    s_and_b32 s27, s22, 3
    s_lshl_b32 s27, s27, 2
    s_add_u32 s26, s26, s27
    s_lshl_b32 s27, s24, 1
    s_add_u32 s26, s26, s27
    s_add_u32 s27, s26, s25
    s_xor_b32 s28, s25, 1
    s_add_u32 s28, s26, s28
    v_and_b32 v1, 63, v0
    v_lshlrev_b32 v2, 4, v1
    s_mul_i32 s30, s25, 27648
    s_mul_i32 s29, s27, 55296
    s_add_u32 s29, s29, s30
    v_add_u32 v3, s29, v2
    s_mul_i32 s29, s28, 55296
    s_add_u32 s29, s29, s30
    v_add_u32 v4, s29, v2
    s_mul_i32 s29, s23, 54
    s_mul_i32 s30, s24, 27
    s_add_u32 s29, s29, s30
    s_add_u32 s29, s29, s25
    s_mul_i32 s29, s29, 5120
    v_add_u32 v5, s29, v2
    s_mul_i32 s31, s21, 5120
    s_mul_i32 s29, s25, 5120
    v_add_u32 v6, s29, v2
    v_add_u32 v7, %d, v6
    v_add_u32 v8, %d, v6
    v_and_b32 v9, 15, v1
    s_lshl_b32 s29, s27, 4
    v_add_u32 v9, s29, v9
    v_mul_u32_u24 v9, 1280, v9
    s_mul_i32 s29, s23, 160
    v_add_u32 v9, s29, v9
    v_lshrrev_b32 v11, 4, v1
    v_lshl_add_u32 v10, v11, 3, v9
    v_lshl_add_u32 v9, v11, 4, v9
    s_mul_i32 s29, s23, 320
    s_add_u32 s29, s29, %d
    v_lshlrev_b32 v12, 4, v11
    v_add_u32 v12, s29, v12
    v_lshlrev_b32 v11, 5, v11
    v_add_u32 v11, s29, v11
    v_add_u32 v13, s31, v2
    v_add_u32 v13, %d, v13
    s_xor_b32 s29, s21, 2
    s_mul_i32 s29, s29, 5120
    v_add_u32 v14, s29, v2
    v_add_u32 v14, %d, v14
    s_waitcnt lgkmcnt(0)
    """ % (3 * G2_STAGE, 6 * G2_STAGE, 5 * 2560, 7 * G2_STAGE, 7 * G2_STAGE))
    srd(k, 12, 10, SZ_W + 10240, WS_WDF); srd(k, 16, 10, SZ_HH, WS_HH); srd(k, 32, 10, 6 * D * 4, WS_MOD)
    srd(k, 36, 6, SZ_SD); srd(k, 40, 10, SZ_SD, WS_X1)
    ACC, FB, NB, LA, X1, GB = 16, 56, 6, 5, 80, 92
    def stage(s):
        k("s_mul_i32 s29, %d, 1\ns_add_u32 m0, s31, %d" % (s * 10240, (s % 7) * G2_STAGE))
        for n in range(4):
            k.vmem("buffer_load_dwordx4 v5, s[12:15], s29 offen offset:%d lds" % (n * 1024), ("st", s))
        k("s_add_u32 s29, s29, 4096\ns_add_u32 m0, s31, %d" % ((s % 7) * G2_STAGE + 4096))
        k.vmem("buffer_load_dwordx4 v5, s[12:15], s29 offen lds", ("st", s))
        for par in range(2):
            st = 2 * s + par
            if st < 27:
                k("s_mov_b32 s29, %d" % (st * 1024))
                k.vmem("buffer_load_dwordx4 %s, v3, s[16:19], s29 offen" % ar(8 * st, 4), ("st", s))
                k.vmem("buffer_load_dwordx4 %s, v4, s[16:19], s29 offen" % ar(8 * st + 4, 4), ("st", s))
    for s in range(6): stage(s)
    frs = [(st, ct) for st in range(27) for ct in range(5)]
    def read(i):
        st, ct = frs[i]
        s, par = st // 2, st % 2
        if par == 0 and ct == 0:
            k.wait(vm=[("st", s)])
            k("s_barrier")
            if s >= 1 and s + 5 < 14: stage(s + 5)
            if s == 10:
                k.vmem("buffer_load_dwordx4 %s, v9, s[40:43], 0 offen" % vr(X1, 4), "ep")
                k.vmem("buffer_load_dwordx4 %s, v9, s[40:43], 0 offen offset:64" % vr(X1 + 4, 4), "ep")
                k.vmem("buffer_load_dwordx2 %s, v10, s[40:43], 0 offen offset:128" % vr(X1 + 8, 2), "ep")
                for j in range(4):
                    k.vmem("buffer_load_dwordx4 %s, v11, s[32:35], 0 offen offset:%d" % (vr(GB + 4 * j, 4), 128 * (j >> 1) + 16 * (j & 1)), "ep")
                k.vmem("buffer_load_dwordx4 %s, v12, s[32:35], 0 offen offset:256" % vr(GB + 16, 4), "ep")
        slot = s % 7
        base, off = [6, 6, 6, 7, 7, 7, 8][slot], (slot % 3) * G2_STAGE
        k.lds("ds_read_b128 %s, v%d offset:%d" % (vr(FB + 4 * (i % NB), 4), base, off + par * 10240 + ct * 1024), ("f", i))
    for i in range(LA): read(i)
    for i, (st, ct) in enumerate(frs):
        if i + LA < len(frs): read(i + LA)
        k.wait(lg=[("f", i)])
        for rt in range(2):
            d = ACC + 4 * (rt * 5 + ct)
            k("v_mfma_f32_16x16x32_bf16 %s, %s, %s, %s" % (vr(d, 4), vr(FB + 4 * (i % NB), 4), ar(8 * st + 4 * rt, 4), "0" if st == 0 else vr(d, 4)))
    for ct in range(5):
        k.lds("ds_write_b128 v13, %s offset:%d" % (vr(ACC + 20 + 4 * ct, 4), 1024 * ct))
    k.wait_all(vm=False)
    k("s_barrier")
    for ct in range(5):
        k.lds("ds_read_b128 %s, v14 offset:%d" % (vr(ACC + 20 + 4 * ct, 4), 1024 * ct), ct)
    k.wait(vm="ep")
    XF = 112
    for i in range(10): unpack(k, XF + 2 * i, XF + 2 * i + 1, X1 + i)
    T = FB
    for ct in range(5):
        k.wait(lg=[ct])
        a = ACC + 4 * ct
        k("v_pk_add_f32 %s, %s, %s\nv_pk_add_f32 %s, %s, %s" % (vr(a, 2), vr(a, 2), vr(a + 20, 2), vr(a + 2, 2), vr(a + 2, 2), vr(a + 22, 2)))
    prs = [ACC + 2 * i for i in range(10)]
    tm = [T, T + 1, T + 2, T + 3, T + 4]
    rndn(k, prs, tm, OPT["RG"])
    if OPT["RG"]:
        for i in range(10): k("v_pk_mul_f32 %s, %s, %s" % (vr(ACC + 2 * i, 2), vr(ACC + 2 * i, 2), vr(GB + 2 * i, 2)))
        rndn(k, prs, tm)
        for i in range(10): k("v_pk_add_f32 %s, %s, %s" % (vr(ACC + 2 * i, 2), vr(ACC + 2 * i, 2), vr(XF + 2 * i, 2)))
    else:
        for i in range(10): k("v_pk_fma_f32 %s, %s, %s, %s" % (vr(ACC + 2 * i, 2), vr(ACC + 2 * i, 2), vr(GB + 2 * i, 2), vr(XF + 2 * i, 2)))
    if OPT.get("SCALE"):
        for i in range(20): k("v_mul_f32 v%d, %s, v%d" % (ACC + i, f32bits(1 + OPT["SCALE"] / 1000.0), ACC + i))
    if OPT.get("SPIKE1"):
        k("s_load_dwordx2 s[4:5], s[0:1], 80\ns_waitcnt lgkmcnt(0)\ns_load_dword s4, s[4:5], 0\ns_waitcnt lgkmcnt(0)\ns_lshr_b32 s4, s4, 31\ns_cmp_eq_u32 s4, 0\ns_cselect_b32 s5, 77, -1\ns_cmp_eq_u32 s2, s5\ns_cselect_b32 s29, %s, 0\nv_cmp_eq_u32 vcc, 5, v0\nv_mov_b32 v15, s29\nv_cndmask_b32 v15, 0, v15, vcc\nv_add_f32 v%d, v%d, v15" % (f32bits(OPT["SPIKE1"] / 10.0), ACC, ACC))
    if OPT.get("SPIKE"):
        k("s_cmp_eq_u32 s2, 77\ns_cselect_b32 s29, %s, 0\nv_cmp_eq_u32 vcc, 5, v0\nv_mov_b32 v15, s29\nv_cndmask_b32 v15, 0, v15, vcc\nv_add_f32 v%d, v%d, v15" % (f32bits(OPT["SPIKE"] / 10.0), ACC, ACC))
    for i in range(10): k("v_cvt_pk_bf16_f32 v%d, v%d, v%d" % (X1 + i, ACC + 2 * i, ACC + 2 * i + 1))
    k.vmem("buffer_store_dwordx4 %s, v9, s[36:39], 0 offen" % vr(X1, 4))
    k.vmem("buffer_store_dwordx4 %s, v9, s[36:39], 0 offen offset:64" % vr(X1 + 4, 4))
    k.vmem("buffer_store_dwordx2 %s, v10, s[36:39], 0 offen offset:128" % vr(X1 + 8, 2))
    k(end + ":\ns_endpgm")
    return ("gemm2_kernel", k.text(), 256 + 216, 256, 102), 8 * G2_STAGE

if __name__ == "__main__":
    assert all((cb * 101 * 4370) >> 16 == cb * 101 // 15 for cb in range(16))
    assert all((x * 4682) >> 16 == x // 14 for x in range(448))
    assert all((x * 205) >> 11 == x // 10 for x in range(60))
    kp = k_prep(); kc, lc = k_conv(); kl, ll = k_ln(); k1, l1 = k_gemm1(); k2, l2 = k_gemm2()
    launches = [("prep_kernel", 370, 256, 40960), ("conv_kernel", 256, 256, lc), ("ln_kernel", 256, 256, ll),
                ("gemm1_kernel", 256, 256, l1), ("gemm2_kernel", 256, 256, l2)]
    ks = [kp, kc, kl, k1, k2]
    pr = OPT.get("PROBE")
    if pr == "empty":
        ks.append(("empty_kernel", "    s_endpgm\n", 8, None, 16))
        launches += [("empty_kernel", 256, 256, 0)] * 8
    if pr == "code":
        ks.append(("code_kernel", "    v_mov_b32 v2, 0\n    v_mov_b32 v3, 0\n" + "".join("    v_add3_u32 v%d, v2, v3, v2\n" % (4 + (i & 7)) for i in range(8192)) + "    s_endpgm\n", 16, None, 16))
        launches += [("code_kernel", 256, 256, 0)]
    if pr == "loop":
        ks.append(("code_kernel", "    v_mov_b32 v2, 0\n    v_mov_b32 v3, 0\n    s_mov_b32 s4, 0\nLl_code:\n" + "".join("    v_add3_u32 v%d, v2, v3, v2\n" % (4 + (i & 7)) for i in range(64)) + "    s_add_u32 s4, s4, 1\n    s_cmp_lt_u32 s4, 128\n    s_cbranch_scc1 Ll_code\n    s_endpgm\n", 16, None, 16))
        launches += [("code_kernel", 256, 256, 0)]
    if pr in ("chaseb", "chasew", "chasew0"):
        k = K("chase")
        k("s_cmp_ge_u32 s2, 1\ns_cbranch_scc1 Lend_chase")
        ldptr(k, 4, 48 if pr == "chaseb" else A_WS)
        k("s_waitcnt lgkmcnt(0)")
        srd(k, 12, 4, SZ_SD, {"chaseb": 0, "chasew": 200 << 20, "chasew0": 64 << 20}[pr])
        k("v_mov_b32 v1, 0\nv_mov_b32 v3, 0\ns_mov_b32 s20, 0\nLl_chase:\nbuffer_load_dword v2, v1, s[12:15], 0 offen\ns_waitcnt vmcnt(0)\nv_and_b32 v2, 0, v2\nv_add_u32 v1, v1, v2\nv_add_u32 v1, 10112, v1\ns_add_u32 s20, s20, 1\ns_cmp_lt_u32 s20, 256\ns_cbranch_scc1 Ll_chase\nLend_chase:\ns_endpgm")
        ks.append(("chase_kernel", k.text(), 16, None, 32))
        launches += [("chase_kernel", 1, 64, 0)]
    if pr in ("spinc", "spinr", "spinc1"):
        ins = "s_memrealtime" if pr == "spinr" else "s_memtime"
        n = 5000 if pr == "spinr" else 100000
        k = K("spin")
        k("%s s[4:5]\ns_waitcnt lgkmcnt(0)\nLl_spin:\n%s s[6:7]\ns_waitcnt lgkmcnt(0)\ns_sub_u32 s8, s6, s4\ns_cmp_lt_u32 s8, %d\ns_cbranch_scc1 Ll_spin\ns_endpgm" % (ins, ins, n))
        ks.append(("spin_kernel", k.text(), 16, None, 32))
        launches += [("spin_kernel", 1 if pr == "spinc1" else 256, 64, 0)]
    if pr == "mfma":
        ks.append(("code_kernel", "    s_mov_b32 s4, 0\nLl_code:\n" + "".join("    v_mfma_f32_16x16x32_bf16 v[%d:%d], v[40:43], v[44:47], v[%d:%d]\n" % (8 + 4 * (i & 7), 11 + 4 * (i & 7), 8 + 4 * (i & 7), 11 + 4 * (i & 7)) for i in range(64)) + "    s_add_u32 s4, s4, 1\n    s_cmp_lt_u32 s4, 96\n    s_cbranch_scc1 Ll_code\n    s_endpgm\n", 64, None, 16))
        launches += [("code_kernel", 256, 256, 0)]
    if pr in ("rd", "rdnt", "wr", "wrnt", "wrsc1"):
        k = K("stream")
        k("s_cmp_ge_u32 s2, 256\ns_cbranch_scc1 Lend_stream")
        ldptr(k, 4, A_WS)
        k("s_waitcnt lgkmcnt(0)")
        srd(k, 12, 4, 64 << 20, 64 << 20)
        k("v_lshlrev_b32 v1, 4, v0\ns_lshl_b32 s21, s2, 12\nv_add_u32 v1, s21, v1\ns_mov_b32 s20, 0\nLl_stream:")
        fl = {"rd": "", "rdnt": "nt", "wr": "", "wrnt": "nt", "wrsc1": "sc1"}[pr]
        for i in range(16):
            if pr.startswith("rd"):
                k("buffer_load_dwordx4 v[%d:%d], v1, s[12:15], 0 offen %s\nv_add_u32 v1, 0x100000, v1" % (4 + 4 * i, 7 + 4 * i, fl))
            else:
                k("buffer_store_dwordx4 v[4:7], v1, s[12:15], 0 offen %s\nv_add_u32 v1, 0x100000, v1" % fl)
        k("s_waitcnt vmcnt(8)\ns_add_u32 s20, s20, 1\ns_cmp_lt_u32 s20, 4\ns_cbranch_scc1 Ll_stream\ns_waitcnt vmcnt(0)\nLend_stream:\ns_endpgm")
        ks.append(("stream_kernel", k.text(), 80, None, 32))
        launches += [("stream_kernel", 256, 256, 0)]
    if OPT.get("FIRST"):
        launches = launches[-1:] + launches[:-1]
    out = OPT.get("out", "base.s")
    open(out, "w").write(build(launches, ks))
    print("wrote", out)
```

```python
import sys, struct
from asmlib import *

NAME = "adaLN_cond__ssm_conv_h3__glu_gated_bilinear__prompt_kernel"
S, D, F = 2048, 640, 1728
WS_KVT, WS_YY, WS_H2F, WS_X1, WS_HH, WS_WDF, WS_MOD, WS_TS, WS_FL = 0, 0x300000, 0x600000, 0x900000, 0xC00000, 0x1300000, 0x1600000, 0x1700000, 0x1780000
WS_END = 0x1790000
SZ_SD, SZ_W = S * D * 2, D * F * 2
OOB = 0x40000000
OPT = dict(HHS=0, KVS=0, SCX=1, SCA=1, SCH=1, SCW=1, WDPOS=0, TS=0, SPIN=1 << 20, out="pers.s", CODEKB=30)
for a in sys.argv[1:]:
    if "=" in a:
        x, y = a.split("="); OPT[x] = int(y) if y.lstrip("-").isdigit() else y

H2B, HHB = OPT.get('H2B', 21), OPT.get('HHB', 55)
P_Q, P_K, P_V, P_SK, P_SSMK, P_SSMD, P_WG, P_WU, P_WD, P_C, P_WM, P_OUT, P_WS = 36, 38, 40, 42, 44, 46, 50, 52, 54, 56, 58, 60, 64
R_WS, R_A, R_B, R_C, R_D, R_W = 4, 8, 12, 16, 20, 24
rWS, rA, rB, rC, rD, rW = ("s[%d:%d]" % (d, d + 3) for d in (R_WS, R_A, R_B, R_C, R_D, R_W))
SPIN, G, J, W, TAG, MODE, t0, t1, MASK = "s3", "s28", "s29", "s30", "s31", "s32", "s33", "s34", "s35"
t2, t3, t4, t5 = "s66", "s67", "s68", "s69"
DVAL, D0, HI, LB, W1M = "s48", "s49", "s62", "s62", "s63"
DCH, LM0, LSO, YYL, WDL, SB0 = "s38", "s39", "s40", "s41", "s42", "s43"
FV = "s44"
LC = "s45"
PM_ = PMK = 26
FL_T, FL_S1, FL_S2, FL_REP, FL_S3, FL_S4, FL_SH, FL_SHR, FL_E = 0, 128, 256, 384, 512, 640, 768, 896, 8704
FL_SWR = 16384
KCOPY, CW, CONV0 = 4160, 4 * 4160 + 4608, 78848
L_MOD, L_YY, L_RED, L_JOB, L_MJOB = 65536, 65536, 78848, 78848, 119808
END = "L_end"

def sc(n): return " sc1" * OPT[n]
def f32bits(x):
    return "0x%08x" % struct.unpack("<I", struct.pack("<f", x))[0]
def srd(k, d, p, nbytes):
    k(f"s_mov_b32 s{d}, s{p}\ns_and_b32 s{d+1}, s{p+1}, 0xffff\ns_mov_b32 s{d+2}, {nbytes:#x}\ns_mov_b32 s{d+3}, 0x20000")
def unpack(k, lo, hi, src):
    k(f"v_lshlrev_b32 v{lo}, 16, v{src}\nv_and_b32 v{hi}, {MASK}, v{src}")
def rnd1(k, a):
    k(f"v_cvt_pk_bf16_f32 v{a}, v{a}, v{a}\nv_lshlrev_b32 v{a}, 16, v{a}")
def cvt4(k, o, a):
    k(f"v_cvt_pk_bf16_f32 v{o}, v{a}, v{a+1}\nv_cvt_pk_bf16_f32 v{o+1}, v{a+2}, v{a+3}")
def pk(k, op, d, *src, mods=""):
    k(f"v_pk_{op}_f32 {vr(d, 2)}, " + ", ".join(vr(x, 2) for x in src) + (" " + mods if mods else ""))
def stamp(k, i):
    if OPT["TS"] == 1: k(f"s_memrealtime {sr(70 + 2 * i, 2)}")
    if OPT["TS"] == 2: k(f"s_memtime {sr(70 + 2 * i, 2)}")
def skip_if(k, reg, cmp, val):
    l = k.label()
    k(f"s_cmp_{cmp}_u32 {reg}, {val}\ns_cbranch_scc1 {l}")
    return l
def only_w3(k): return skip_if(k, W, "lg", 3)
def lanes(k, n):
    m = (1 << n) - 1
    if n <= 32: k(f"s_mov_b32 exec_lo, {m:#x}\ns_mov_b32 exec_hi, 0")
    else: k(f"s_mov_b32 exec_lo, -1\ns_mov_b32 exec_hi, {m >> 32:#x}")
def all_lanes(k): k("s_mov_b64 exec, -1")

def flag_addr(k, line, own=True):
    k(f"s_lshl_b32 {t0}, {G}, 10\ns_add_u32 {t0}, {t0}, {WS_FL + line:#x}")
    if own: k(f"s_lshl_b32 {t1}, {LC if line == FL_S4 else J}, 2\ns_add_u32 {t0}, {t0}, {t1}\nv_mov_b32 v2, {t0}")
    else: k(f"v_lshl_add_u32 v2, v1, 2, {t0}")
def signal(k, line):
    slow, done = k.label(), k.label()
    flag_addr(k, line)
    k(f"v_mov_b32 v3, {FV}")
    lanes(k, 1)
    k(f"s_cmp_lg_u32 {MODE}, 0\ns_cbranch_scc1 {slow}")
    k(f"buffer_store_dword v3, v2, {rWS}, 0 offen\ns_branch {done}")
    k(f"{slow}:\nbuffer_wbl2 sc1\ns_waitcnt vmcnt(0)\nbuffer_store_dword v3, v2, {rWS}, 0 offen sc1")
    k(f"{done}:")
    all_lanes(k)
def spin(k, load, test, n):
    lp, ok = k.label(), k.label()
    lanes(k, n)
    k(f"s_mov_b32 {SPIN}, {OPT['SPIN']}\n{lp}:\n{load}\ns_waitcnt vmcnt(0)\n{test}")
    k(f"s_cbranch_vccz {ok}\ns_sub_u32 {SPIN}, {SPIN}, 1\ns_cmp_lg_u32 {SPIN}, 0\ns_cbranch_scc1 {lp}\ns_mov_b64 exec, -1\ns_branch {END}")
    k(f"{ok}:")
    all_lanes(k)
def poll(k, line, n, val=FV):
    flag_addr(k, line, own=False)
    spin(k, f"buffer_load_dword v3, v2, {rWS}, 0 offen sc1", f"v_cmp_ne_u32 vcc, {val}, v3", n)
def w3_signal(k, line):
    l = only_w3(k); signal(k, line); k(l + ":")
def w3_poll(k, line, n):
    l = only_w3(k); poll(k, line, n); k(l + ":")
def first_poll(k):
    lp, lp2, slow, ok = k.label(), k.label(), k.label(), k.label()
    flag_addr(k, FL_S1, own=False)
    lanes(k, 32)
    k(f"s_mov_b32 {SPIN}, {1 if OPT.get('FORCESLOW') else 40}\n{lp}:")
    k(f"buffer_load_dword v3, v2, {rWS}, 0 offen sc1\ns_sub_u32 {SPIN}, {SPIN}, 1\ns_waitcnt vmcnt(0)\nv_cmp_ne_u32 vcc, {FV}, v3")
    if not OPT.get("FORCESLOW"): k(f"s_cbranch_vccz {ok}")
    k(f"s_cmp_lg_u32 {SPIN}, 0\ns_cbranch_scc1 {lp}")
    flag_addr(k, FL_T)
    k(f"v_mov_b32 v3, {FV}")
    lanes(k, 1)
    k(f"buffer_store_dword v3, v2, {rWS}, 0 offen sc1")
    all_lanes(k)
    flag_addr(k, FL_S1, own=False)
    k(f"v_lshrrev_b32 v4, 5, v1\nv_mul_u32_u24 v4, {128 + FL_S1 - FL_T}, v4\nv_sub_u32 v2, v2, v4")
    k(f"s_mov_b32 {SPIN}, {OPT['SPIN']}\n{lp2}:")
    k(f"buffer_load_dword v3, v2, {rWS}, 0 offen sc1\ns_sub_u32 {SPIN}, {SPIN}, 1\ns_cmp_eq_u32 {SPIN}, 0\ns_cbranch_scc1 {END}\ns_waitcnt vmcnt(0)")
    k(f"v_cmp_ne_u32 vcc, {FV}, v3\nv_subrev_u32 v4, {TAG}, v3\nv_cmp_le_u32 s[0:1], 8, v4")
    if not OPT.get("FORCESLOW"): k(f"s_cmp_eq_u32 vcc_lo, 0\ns_cbranch_scc1 {ok}")
    k(f"s_cmp_lg_u32 s1, 0\ns_cbranch_scc1 {lp2}")
    if not OPT.get("FORCESLOW"): k(f"s_cmp_eq_u32 vcc_hi, 0\ns_cbranch_scc1 {lp2}")
    k(f"s_mov_b32 {MODE}, 1\ns_add_u32 {FV}, {TAG}, 8")
    signal(k, FL_S1)
    k(f"{ok}:")
    all_lanes(k)
def slow_s1(k):
    l = skip_if(k, MODE, "eq", 0)
    poll(k, FL_S1, 32)
    k(l + ":")

KR, VR, SKR, SF, KF, PT = 16, 38, 54, 62, 78, 122
def p1a_addr(k):
    k(f"""
    v_mul_u32_u24 v8, 86, v1
    v_lshrrev_b32 v8, 8, v8
    v_mul_u32_u24 v9, 3, v8
    v_sub_u32 v9, v1, v9
    v_add_u32 v9, 8, v9
    v_lshrrev_b32 v6, 3, v0
    v_and_b32 v7, 7, v0
    v_cmp_lt_u32 vcc, 191, v0
    v_cndmask_b32 v6, v6, v8, vcc
    v_cndmask_b32 v7, v7, v9, vcc
    s_mul_i32 {t0}, {J}, 11
    v_add_u32 v7, {t0}, v7
    v_cmp_gt_u32 vcc, 20, v6
    v_lshrrev_b32 v8, 8, v7
    v_cmp_eq_u32 s[{PM_}:{PM_+1}], 0, v8
    v_lshlrev_b32 v7, 3, v7
    s_mul_i32 {t1}, {G}, 80
    v_lshlrev_b32 v6, 2, v6
    v_add_u32 v6, {t1}, v6
    s_and_b64 s[{PM_}:{PM_+1}], s[{PM_}:{PM_+1}], vcc
    v_mul_u32_u24 v8, 1280, v7
    v_lshl_add_u32 v8, v6, 1, v8
    v_subrev_u32 v9, 3840, v8
    v_cmp_eq_u32 vcc, 0, v7
    v_bfrev_b32 v10, 2
    v_cndmask_b32 v9, v9, v10, vcc
    v_lshlrev_b32 v10, 3, v6
    v_lshlrev_b32 v11, 12, v6
    v_lshl_add_u32 v11, v7, 1, v11
    s_movk_i32 {t2}, 3840
    s_movk_i32 {t3}, 7680
    """)
def p1a_loads(k):
    so = ["0", t2, t3]
    for r in range(3):
        k.vmem(f"buffer_load_dwordx2 {vr(KR + 2 * r, 2)}, v9, {rA}, 0 offen offset:{1280 * r}", "k")
    for r in range(8):
        k.vmem(f"buffer_load_dwordx2 {vr(KR + 6 + 2 * r, 2)}, v8, {rA}, {so[r // 3]} offen offset:{1280 * (r % 3)}", "k")
    k.vmem(f"buffer_load_dwordx4 {vr(SKR, 4)}, v10, {rC}, 0 offen", "k")
    k.vmem(f"buffer_load_dwordx4 {vr(SKR + 4, 4)}, v10, {rC}, 0 offen offset:16", "k")
    for r in range(8):
        k.vmem(f"buffer_load_dwordx2 {vr(VR + 2 * r, 2)}, v8, {rB}, {so[r // 3]} offen offset:{1280 * (r % 3)}", "v")
def p1a_compute(k, wait):
    k(f"s_mov_b64 exec, s[{PMK}:{PMK+1}]")
    wait()
    for c in range(4):
        unpack(k, SF + c, SF + 4 + c, SKR + 2 * c); unpack(k, SF + 8 + c, SF + 12 + c, SKR + 2 * c + 1)
    for r in range(11):
        unpack(k, KF + 4 * r, KF + 4 * r + 1, KR + 2 * r); unpack(k, KF + 4 * r + 2, KF + 4 * r + 3, KR + 2 * r + 1)
    for i0 in range(0, 8, 2):
        items = [(i, p) for i in (i0, i0 + 1) for p in (0, 1)]
        acc = [PT + 2 * n for n in range(4)]
        vt = [PT + 8 + 2 * n for n in range(4)]
        for a, (i, p) in zip(acc, items): pk(k, "mul", a, KF + 4 * i + 2 * p, SF + 12 + 2 * p)
        for j in (2, 1, 0):
            for a, (i, p) in zip(acc, items): pk(k, "fma", a, KF + 4 * (i + 3 - j) + 2 * p, SF + 4 * j + 2 * p, a)
        for t, (i, p) in zip(vt, items): unpack(k, t, t + 1, VR + 2 * i + p)
        for a, t, (i, p) in zip(acc, vt, items): pk(k, "mul", KF + 4 * i + 2 * p, a, t)
    k(f"s_movk_i32 {t2}, 4096\ns_movk_i32 {t3}, 8192\ns_movk_i32 {t4}, 12288")
    so = ["0", t2, t3, t4]
    for c in range(4):
        for jj in range(4):
            k(f"v_cvt_pk_bf16_f32 v{KR + 4 * c + jj}, v{KF + 4 * (7 - 2 * jj) + c}, v{KF + 4 * (6 - 2 * jj) + c}")
        k.vmem(f"buffer_store_dwordx4 {vr(KR + 4 * c, 4)}, v11, {rWS}, {so[c]} offen{sc('KVS')}", "st")
    all_lanes(k)

VWA, VWB = 12, 13
def w1_setup(k):
    k(f"s_bitcmp1_b32 {W}, 0\ns_cselect_b32 s0, s{P_WU}, s{P_WG}\ns_cselect_b32 s1, s{P_WU+1}, s{P_WG+1}")
    srd(k, R_W, 0, SZ_W)
    k(f"""
    v_lshrrev_b32 v14, 3, v1
    s_lshr_b32 {t0}, {W}, 1
    s_lshl_b32 {t1}, {t0}, 4
    v_add_u32 v14, {t1}, v14
    v_mul_u32_u24 v14, 3456, v14
    v_bfe_u32 v15, v1, 1, 2
    v_lshrrev_b32 v{VWB}, 4, v1
    v_xor_b32 v15, v15, v{VWB}
    v_lshlrev_b32 v15, 5, v15
    v_and_b32 v{VWB}, 1, v1
    v_lshl_add_u32 v15, v{VWB}, 4, v15
    v_add_u32 v14, v14, v15
    s_sub_u32 {LC}, {J}, 4
    s_add_u32 {t1}, {J}, 7
    s_cmp_lt_u32 {J}, 24
    s_cselect_b32 {LC}, {t1}, {LC}
    s_cmp_lt_u32 {J}, 20
    s_cselect_b32 {LC}, {J}, {LC}
    s_cmp_eq_u32 {J}, 31
    s_cselect_b32 {LC}, {J}, {LC}
    s_lshl_b32 {t1}, {LC}, 7
    v_add_u32 v{VWA}, {t1}, v14
    v_add_u32 v{VWB}, {8 * 3456 - 1024}, v{VWA}
    s_and_b32 {t1}, {W}, 1
    s_lshl_b32 {t1}, {t1}, 12
    s_lshl_b32 {t0}, {t0}, 11
    s_add_u32 {W1M}, {t0}, {t1}
    """)
def w1_rot_init(k, first, n):
    k(f"s_mul_i32 {LSO}, {G}, {n * OPT.get('ROT', 1)}\ns_lshr_b32 {LSO}, {LSO}, 3\ns_add_u32 {LSO}, {LSO}, {first}")
def w1_rot(k, first, n, tag="w1"):
    k(f"s_lshl_b32 {t0}, {LSO}, 13\ns_add_u32 m0, {W1M}, {t0}\ns_mul_i32 {t0}, {LSO}, {32 * 3456}")
    k.vmem(f"buffer_load_dwordx4 v{VWA}, {rW}, {t0} offen lds", tag)
    k.vmem(f"buffer_load_dwordx4 v{VWB}, {rW}, {t0} offen offset:1024 lds", tag)
    k(f"s_add_u32 {LSO}, {LSO}, 1\ns_cmp_lt_u32 {LSO}, {first + n}\ns_cselect_b32 {LSO}, {LSO}, {first}")
def w1_block(k, kb, tag="w1"):
    k(f"s_add_u32 m0, {W1M}, {8192 * kb}\ns_mov_b32 {t0}, {kb * 32 * 3456}")
    k.vmem(f"buffer_load_dwordx4 v{VWA}, {rW}, {t0} offen lds", tag)
    k.vmem(f"buffer_load_dwordx4 v{VWB}, {rW}, {t0} offen offset:1024 lds", tag)

KRAW, KPATCH, QR = 140, 164, 240
VKA, VP, VH, VF_, VX, VKV = 166, 167, 168, 172, 173, 174
def conv_pre(k):
    srd(k, R_D, P_SSMK, D * S * 2)
    k(f"""
    s_mul_i32 {D0}, {G}, 80
    s_lshl_b32 {t0}, {J}, 2
    s_add_u32 {D0}, {D0}, {t0}
    s_add_u32 {DCH}, {D0}, {W}
    s_lshl_b32 {t1}, {DCH}, 12
    v_lshl_add_u32 v{VKA}, v1, 4, {t1}
    v_and_b32 v{VP}, 15, v1
    v_lshrrev_b32 v{VH}, 4, v1
    v_add_u32 v169, v{VP}, v{VH}
    v_subrev_u32 v169, 16, v169
    v_cmp_gt_i32 vcc, 0, v169
    v_lshl_add_u32 v169, v169, 1, {t1}
    v_bfrev_b32 v170, 2
    v_cndmask_b32 v169, v169, v170, vcc
    s_mul_i32 {LB}, {W}, {CW}
    s_add_u32 {LB}, {LB}, {CONV0}
    s_lshr_b32 {t0}, {DCH}, 1
    s_lshl_b32 {t0}, {t0}, 2
    s_load_dword {DVAL}, s[{P_SSMD}:{P_SSMD+1}], {t0}
    """)
    k.vmem(f"buffer_load_ushort v{KPATCH}, v169, {rD}, 0 offen", "kr")
def conv_kloads(k):
    for n in range(4):
        k.vmem(f"buffer_load_dwordx4 {vr(KRAW + 6 * n, 4)}, v{VKA}, {rD}, 0 offen offset:{1024 * n}", "kr")
        k.vmem(f"buffer_load_dwordx2 {vr(KRAW + 6 * n + 4, 2)}, v{VKA}, {rD}, 16 offen offset:{1024 * n}", "kr")
    for c in (0, 2):
        k(f"s_add_u32 m0, {LB}, {c * KCOPY + 32}")
        for n in range(4):
            k.vmem(f"buffer_load_dwordx4 v{VKA}, {rD}, {2 * c} offen offset:{n * 1024} lds", "kd")
def conv_ktouch(k):
    k(f"s_lshl_b32 {t2}, {D0}, 12\nv_lshl_add_u32 v170, v1, 7, {t2}")
    k(f"buffer_load_dword v23, v170, {rD}, 0 offen\ns_movk_i32 {t2}, 8192\nbuffer_load_dword v24, v170, {rD}, {t2} offen")
def conv_odd(k):
    k(f"v_lshl_add_u32 v170, v1, 4, {LB}")
    for n in range(4):
        d = KRAW + 6 * n
        for c, t in ((1, 16 + 8 * (n & 1)), (3, 20 + 8 * (n & 1))):
            for j in range(4):
                k(f"v_alignbit_b32 v{t + j}, v{d + j + 1 + (c >> 1)}, v{d + j + (c >> 1)}, 16")
            k.lds(f"ds_write_b128 v170, {vr(t, 4)} offset:{c * KCOPY + 32 + 1024 * n}")
def conv_build(k):
    k(f"""
    v_mul_u32_u24 v171, {KCOPY}, v{VH}
    v_lshl_add_u32 v171, v{VP}, 1, v171
    v_add_u32 v171, {LB}, v171
    ds_write_b16 v171, v{KPATCH}
    v_mov_b32 v32, 0
    v_mov_b32 v33, 0
    v_lshl_add_u32 v171, v1, 3, {LB}
    ds_write_b64 v171, v[32:33] offset:{4 * KCOPY}
    v_add_u32 v34, 1, v{VP}
    v_and_b32 v35, 3, v34
    v_lshrrev_b32 v34, 2, v34
    v_mul_u32_u24 v35, {KCOPY}, v35
    v_lshlrev_b32 v36, 1, v{VH}
    v_sub_u32 v34, v34, v36
    v_lshl_add_u32 v35, v34, 3, v35
    s_add_u32 {t0}, {LB}, 48
    v_add_u32 v{VF_}, {t0}, v35
    v_lshl_add_u32 v36, v{VP}, 1, v{VH}
    s_add_u32 {t0}, {LB}, {4 * KCOPY + 480}
    v_lshl_add_u32 v{VX}, v36, 4, {t0}
    v_lshrrev_b32 v34, 1, v{VH}
    v_lshl_add_u32 v34, v{VP}, 1, v34
    v_lshlrev_b32 v34, 4, v34
    v_and_b32 v35, 1, v{VH}
    v_xor_b32 v35, 1, v35
    v_lshl_add_u32 v34, v35, 3, v34
    s_add_u32 {t0}, {LB}, {4 * KCOPY + 512}
    v_add_u32 v{VKV}, {t0}, v34
    """)
CACC, CF, CX = 16, 48, 80
def conv_main(k, loop_end):
    k(f"s_add_u32 m0, {LB}, {4 * KCOPY + 512}")
    for n in range(4):
        k.vmem(f"buffer_load_dwordx4 v{VKA}, {rWS}, 0 offen offset:{n * 1024}{sc('SCX')} lds", "x")
    q_loads(k)
    for i in range(32): k(f"v_mov_b32 v{CACC + i}, 0")
    k.wait(vm="x")
    k.wait_all(vm=False)
    stamp(k, 5)
    def ldF(a):
        k.lds(f"ds_read_b64 {vr(CF + 4 * a, 2)}, v{VF_} offset:{512 * a}", ("F", a))
        k.lds(f"ds_read_b64 {vr(CF + 4 * a + 2, 2)}, v{VF_} offset:{512 * a + 8}", ("F", a))
    def ldX(b):
        k.lds(f"ds_read_b128 {vr(CX + 4 * b, 4)}, v{VX} offset:{512 * b}", ("X", b))
    for a in range(8):
        ldX(7 - a); ldF(a)
    step = f"v_add_u32 v{VF_}, 64, v{VF_}\nv_subrev_u32 v{VX}, 64, v{VX}"
    k(step)
    k(f"s_mul_i32 {LSO}, {G}, {32 * 3456 * OPT.get('ROT', 1)}\ns_lshl_b32 {LM0}, {G}, 13\ns_mul_i32 {LM0}, {LM0}, {OPT.get('ROT', 1)}\ns_add_u32 {LM0}, {LM0}, {W1M}\ns_mov_b32 {t5}, 0")
    state0 = list(k.lg)
    lp = k.label()
    k(lp + ":")
    for a in range(8):
        for b in range(7 - a, -1, -1):
            k.wait(lg=[("F", a), ("X", b)])
            u = a + b
            k(f"v_mfma_f32_16x16x32_bf16 {vr(CACC + 4 * u, 4)}, {vr(CF + 4 * a, 4)}, {vr(CX + 4 * b, 4)}, {vr(CACC + 4 * u, 4)}")
            if b == 7 - a: ldX(b)
            if a == 0 and b == 3: k(f"s_mov_b32 m0, {LM0}")
            if a == 0 and b == 2 and not OPT.get("NOW1"): k(f"buffer_load_dwordx4 v{VWA}, {rW}, {LSO} offen lds")
            if a == 3 and b == 2 and not OPT.get("NOW1"): k(f"buffer_load_dwordx4 v{VWB}, {rW}, {LSO} offen offset:1024 lds")
        ldF(a)
    k(step)
    assert k.lg == state0[len(state0) - len(k.lg):], (k.lg, state0)
    k(f"s_add_u32 {LM0}, {LM0}, 8192\ns_add_u32 {LSO}, {LSO}, {32 * 3456}\ns_cmp_lt_u32 {LSO}, {8 * 32 * 3456}\ns_cselect_b32 {LSO}, {LSO}, 0\ns_cselect_b32 {LM0}, {LM0}, {W1M}")
    k(f"s_add_u32 {t5}, {t5}, 1\ns_cmp_lt_u32 {t5}, 8\ns_cbranch_scc1 {lp}")
    k.wait_all(vm=False)
    stamp(k, 6)
    loop_end()
    KV, T = CF, CX
    for u in range(8):
        k.lds(f"ds_read_b64 {vr(KV + 2 * u, 2)}, v{VKV} offset:{512 * u}", ("kv", u))
    k(f"""
    s_and_b32 {t0}, {DCH}, 1
    s_lshl_b32 {t0}, {t0}, 4
    s_lshr_b32 {DVAL}, {DVAL}, {t0}
    s_lshl_b32 {DVAL}, {DVAL}, 16
    v_mov_b32 v2, {DVAL}
    v_mov_b32 v3, {DVAL}
    v_bfe_u32 v4, v{VP}, 2, 1
    v_lshlrev_b32 v4, 1, v4
    v_xor_b32 v4, v4, v{VH}
    v_lshlrev_b32 v4, 3, v4
    v_lshl_add_u32 v4, v{VP}, 5, v4
    v_add_u32 v4, {LB}, v4
    """)
    for u in range(8):
        k.wait(lg=[("kv", u)])
        a, t = CACC + 4 * u, T + 4 * (u & 1)
        unpack(k, t + 3, t + 2, KV + 2 * u); unpack(k, t + 1, t, KV + 2 * u + 1)
        pk(k, "fma", a, t, 2, a); pk(k, "fma", a + 2, t + 2, 2, a + 2)
        o = T + 8 + 2 * (u & 1)
        cvt4(k, o, a)
        k.lds(f"ds_write_b64 v4, {vr(o, 2)} offset:{512 * u}")
    k(f"""
    v_lshrrev_b32 v2, 3, v0
    v_and_b32 v3, 7, v0
    v_lshrrev_b32 v4, 1, v3
    v_mul_u32_u24 v4, {CW}, v4
    v_lshl_add_u32 v4, v2, 5, v4
    v_lshrrev_b32 v5, 2, v2
    v_xor_b32 v5, v5, v3
    v_and_b32 v5, 1, v5
    v_lshl_add_u32 v4, v5, 4, v4
    v_add_u32 v4, {CONV0}, v4
    v_mul_u32_u24 v5, {128 if OPT.get('YYLIN') else 20480}, v2
    v_lshl_add_u32 v5, v3, 4, v5
    s_lshl_b32 {t0}, {D0}, {12 if OPT.get('YYLIN') else 5}
    v_add_u32 v5, {t0}, v5
    """)
    k.wait_all(vm=False)
    if OPT.get("TSA") == 2:
        stamp(k, 8); k("s_waitcnt vmcnt(0)"); stamp(k, 9)
    k("s_barrier")
    for i in range(4):
        k.lds(f"ds_read_b128 {vr(16 + 4 * i, 4)}, v4 offset:{1024 * i}", i)
    for i in range(4):
        k.wait(lg=[i])
        k(f"s_mov_b32 {t0}, {WS_YY + 32 * (128 if OPT.get('YYLIN') else 20480) * i:#x}")
        k.vmem(f"buffer_store_dwordx4 {vr(16 + 4 * i, 4)}, v5, {rWS}, {t0} offen {OPT.get('YYF', 'sc1').replace('_', ' ')}")

MW, MSV, MACC, MT = 140, 16, 36, 44
def mod_loads(k):
    srd(k, R_A, P_C, D * 2); srd(k, R_B, P_WM, D * 3840 * 2)
    k(f"""
    v_and_b32 v2, 7, v0
    v_lshrrev_b32 v3, 3, v0
    v_mul_u32_u24 v4, 0x25800, v3
    v_lshl_add_u32 v4, v2, 4, v4
    s_lshl_b32 {t0}, {HI}, 7
    v_add_u32 v4, {t0}, v4
    v_lshlrev_b32 v5, 3, v0
    """)
    k.vmem(f"buffer_load_dwordx2 v[224:225], v5, {rA}, 0 offen", "c")
    for i in range(20):
        k(f"s_mov_b32 {t0}, {i * 7680}")
        k.vmem(f"buffer_load_dwordx4 {vr(MW + 4 * i, 4)}, v4, {rB}, {t0} offen", ("w", i))
def mod_job(k):
    T = MT
    k.wait(vm="c")
    unpack(k, 8, 9, 224); unpack(k, 10, 11, 225)
    for i in range(4): k(f"v_mul_f32 v{T + i}, {f32bits(-1.4426950408889634)}, v{8 + i}")
    for i in range(4): k(f"v_exp_f32 v{T + i}, v{T + i}")
    for i in range(4): k(f"v_add_f32 v{T + i}, 1.0, v{T + i}")
    for i in range(4): k(f"v_rcp_f32 v{T + i}, v{T + i}")
    for i in range(4): k(f"v_mul_f32 v{T + i}, v{T + i}, v{8 + i}")
    cvt4(k, 8, T)
    unpack(k, T, T + 1, 8); unpack(k, T + 2, T + 3, 9)
    k(f"v_lshlrev_b32 v6, 4, v0\nv_add_u32 v6, {L_MJOB}, v6")
    k.lds(f"ds_write_b128 v6, {vr(T, 4)}")
    k.wait_all(vm=False)
    k(f"s_barrier\nv_lshrrev_b32 v7, 3, v0\nv_mul_u32_u24 v6, 80, v7\nv_add_u32 v6, {L_MJOB}, v6")
    for i in range(5): k.lds(f"ds_read_b128 {vr(MSV + 4 * i, 4)}, v6 offset:{16 * i}")
    k.wait_all(vm=False)
    for i in range(20):
        k.wait(vm=[("w", i)])
        for c in range(4): unpack(k, T + 2 * c, T + 2 * c + 1, MW + 4 * i + c)
        sv = MSV + i
        for c in range(4):
            if i == 0: pk(k, "mul", MACC + 2 * c, T + 2 * c, sv, mods="op_sel_hi:[1,0]")
            else: pk(k, "fma", MACC + 2 * c, T + 2 * c, sv & ~1, MACC + 2 * c, mods="op_sel:[0,1,0] op_sel_hi:[1,1,1]" if sv & 1 else "op_sel_hi:[1,0,1]")
    k(f"v_lshlrev_b32 v6, 5, v0\nv_add_u32 v6, {L_MJOB + 4096}, v6")
    k.lds(f"ds_write_b128 v6, {vr(MACC, 4)}")
    k.lds(f"ds_write_b128 v6, {vr(MACC + 4, 4)} offset:16")
    k.wait_all(vm=False)
    k("s_barrier")
    skip = skip_if(k, W, "lg", 0)
    k(f"v_lshlrev_b32 v6, 2, v0\nv_add_u32 v7, {L_MJOB + 4096}, v6")
    for i in range(32):
        k.lds(f"ds_read_b32 v{MW + i}, v7 offset:{256 * i}")
        if i == 14: k.wait_all(vm=False)
    k.wait_all(vm=False)
    for st in (16, 8, 4, 2, 1):
        for i in range(st): k(f"v_add_f32 v{MW + i}, v{MW + i}, v{MW + i + st}")
    rnd1(k, MW)
    k(f"v_add_f32 v{MW + 1}, 1.0, v{MW}")
    rnd1(k, MW + 1)
    k(f"""
    s_mul_i32 {t0}, {HI}, 205
    s_lshr_b32 {t0}, {t0}, 11
    s_cmp_eq_u32 {t0}, 1
    s_cselect_b64 vcc, -1, 0
    s_cmp_eq_u32 {t0}, 4
    s_cselect_b64 vcc, -1, vcc
    v_cndmask_b32 v{MW}, v{MW}, v{MW + 1}, vcc
    s_lshl_b32 {t0}, {HI}, 8
    s_add_u32 {t0}, {t0}, {WS_MOD:#x}
    """)
    k.vmem(f"buffer_store_dword v{MW}, v6, {rWS}, {t0} offen sc1")
    k(skip + ":")
def wd_loads(k):
    srd(k, R_A, P_WD, SZ_W)
    k(f"s_mul_i32 {t2}, {W}, 10240\nv_lshl_add_u32 v2, v1, 4, {t2}\ns_add_u32 {t2}, {t2}, {L_JOB}\ns_mov_b32 {t5}, {HI}")
    for blk in range(2):
        k(f"s_mul_i32 {t3}, {t5}, 40960")
        if blk: k(f"s_add_u32 {t3}, {t3}, {32 * 40960}")
        for n in range(10):
            if n % 4 == 0:
                k(f"s_add_u32 m0, {t2}, {blk * 40960 + (n // 4) * 4096}\ns_add_u32 {t0}, {t3}, {(n // 4) * 4096}")
            k.vmem(f"buffer_load_dwordx4 v2, {rA}, {t0} offen offset:{(n % 4) * 1024} lds", "wr")
def wd_job(k):
    k(f"""
    v_lshrrev_b32 v7, 2, v1
    v_and_b32 v8, 3, v1
    v_mul_u32_u24 v7, 1280, v7
    s_mul_i32 {t0}, {W}, 320
    s_add_u32 {t0}, {t0}, {L_JOB}
    v_add_u32 v7, {t0}, v7
    v_lshl_add_u32 v9, v8, 4, v7
    v_lshl_add_u32 v10, v8, 3, v7
    v_lshlrev_b32 v6, 4, v1
    """)
    done = k.label()
    for blk in range(2):
        if blk:
            k(f"s_cmp_ge_u32 {t5}, 22\ns_cbranch_scc1 {done}\ns_add_u32 {t5}, {t5}, 32\nv_add_u32 v9, 40960, v9\nv_add_u32 v10, 40960, v10")
        for cc in range(2):
            for ct in range(5):
                b = 16 + 4 * (5 * cc + ct) + 40 * blk
                for t in range(2):
                    if ct < 4:
                        k.lds(f"ds_read_b64_tr_b16 {vr(b + 2 * t, 2)}, v9 offset:{t * 20480 + cc * 160 + (ct >> 1) * 64 + (ct & 1) * 8}", (cc, ct))
                    else:
                        k.lds(f"ds_read_b64_tr_b16 {vr(b + 2 * t, 2)}, v10 offset:{t * 20480 + cc * 160 + 128}", (cc, ct))
            k(f"s_lshl_b32 {t0}, {W}, 1\ns_add_u32 {t0}, {t0}, {cc}\ns_mul_i32 {t0}, {t0}, 54\ns_add_u32 {t0}, {t0}, {t5}\ns_mul_i32 {t0}, {t0}, 5120\ns_add_u32 {t0}, {t0}, {WS_WDF:#x}")
            for ct in range(5):
                b = 16 + 4 * (5 * cc + ct) + 40 * blk
                k.wait(lg=[(cc, ct)])
                if ct == 4: k(f"s_add_u32 {t0}, {t0}, 4096")
                if not OPT.get("NOWD"): k.vmem(f"buffer_store_dwordx4 {vr(b, 4)}, v6, {rWS}, {t0} offen offset:{(ct % 4) * 1024} sc1")
    k(done + ":")

PX, PN, PY, PM, PT2, PRAW = 40, 60, 80, 100, 200, 208
def p2_addr(k):
    k(f"""
    s_lshl_b32 {t0}, {G}, 5
    s_add_u32 {t0}, {t0}, {J}
    s_mul_i32 {t1}, {W}, 160
    v_and_b32 v2, 7, v1
    v_lshrrev_b32 v3, 3, v1
    v_lshl_add_u32 v4, v3, 2, {t1}
    s_lshl_b32 {t2}, {t0}, 3
    v_add_u32 v6, {t2}, v2
    v_mul_u32_u24 v6, 1280, v6
    v_lshl_add_u32 v6, v4, 1, v6
    v_lshlrev_b32 v15, 2, v4
    v_add_u32 v15, {L_MOD}, v15
    v_add_u32 v7, {t1}, v1
    v_lshlrev_b32 v7, 5, v7
    s_lshr_b32 {t2}, {t0}, 1
    s_and_b32 {t3}, {t0}, 1
    s_mul_i32 {t4}, {t2}, 20480
    s_lshl_b32 {t0}, {t3}, 4
    s_add_u32 {t4}, {t4}, {t0}
    s_add_u32 {t4}, {t4}, {WS_YY:#x}
    v_add_u32 v7, {t4}, v7
    v_lshrrev_b32 v8, 4, v1
    v_lshlrev_b32 v8, 3, v8
    v_bfe_u32 v9, v1, 1, 1
    v_lshl_add_u32 v8, v9, 2, v8
    v_bfe_u32 v9, v1, 2, 2
    v_add_u32 v8, v8, v9
    v_lshlrev_b32 v8, 4, v8
    v_and_b32 v9, 1, v1
    v_lshl_add_u32 v8, v9, 3, v8
    s_mul_i32 {YYL}, {W}, 3072
    s_add_u32 {YYL}, {YYL}, {L_YY}
    v_add_u32 v8, {YYL}, v8
    v_lshlrev_b32 v10, 5, v2
    v_add_u32 v10, {L_RED}, v10
    v_bfe_u32 v9, v1, 4, 1
    v_lshl_add_u32 v9, v9, 4, v10
    s_lshl_b32 {t4}, {W}, 2
    v_add_u32 v9, {t4}, v9
    v_and_b32 v11, 3, v3
    v_lshlrev_b32 v11, 4, v11
    s_lshl_b32 {t4}, {t3}, 3
    v_add_u32 v11, {t4}, v11
    v_add_u32 v11, v11, v2
    v_lshlrev_b32 v11, 4, v11
    v_lshrrev_b32 v4, 2, v3
    v_lshl_add_u32 v11, v4, 3, v11
    s_mul_i32 {t4}, {t2}, {H2B}
    s_mul_i32 {t1}, {W}, 5
    s_add_u32 {t4}, {t4}, {t1}
    s_lshl_b32 {t4}, {t4}, 10
    s_add_u32 {t4}, {t4}, {WS_H2F:#x}
    v_add_u32 v11, {t4}, v11
    """)
def q_loads(k):
    srd(k, R_A, P_Q, SZ_SD)
    for t in range(5):
        k.vmem(f"buffer_load_dwordx2 {vr(QR + 2 * t, 2)}, v6, {rA}, 0 offen offset:{64 * t}", "q")
def ln_stats(k, X, region):
    a, b, t = PT2, PT2 + 2, PT2 + 4
    pk(k, "add", a, X, X + 2); pk(k, "mul", b, X, X); pk(k, "fma", b, X + 2, X + 2, b)
    for i in range(2, 10):
        pk(k, "add", a, a, X + 2 * i); pk(k, "fma", b, X + 2 * i, X + 2 * i, b)
    k(f"""
    v_add_f32 v{a}, v{a}, v{a + 1}
    v_add_f32 v{b}, v{b}, v{b + 1}
    v_add_f32 v{a}, v{a}, v{a} row_ror:8 row_mask:0xf bank_mask:0xf
    v_add_f32 v{b}, v{b}, v{b} row_ror:8 row_mask:0xf bank_mask:0xf
    v_permlane16_swap_b32 v{a}, v{b}
    v_add_f32 v{a}, v{a}, v{b}
    v_mov_b32 v{b}, v{a}
    v_permlane32_swap_b32 v{a}, v{b}
    v_add_f32 v{a}, v{a}, v{b}
    """)
    k.lds(f"ds_write_b32 v9, v{a} offset:{region}")
    k.wait_all(vm=False)
    k("s_barrier")
    k.lds(f"ds_read_b128 {vr(a, 4)}, v10 offset:{region}")
    k.lds(f"ds_read_b128 {vr(t, 4)}, v10 offset:{region + 16}")
    k.wait_all(vm=False)
    pk(k, "add", a, a, a + 2); pk(k, "add", t, t, t + 2)
    k(f"""
    v_add_f32 v{a}, v{a}, v{a + 1}
    v_add_f32 v{t}, v{t}, v{t + 1}
    v_mul_f32 v{a}, {f32bits(1.0 / 640)}, v{a}
    v_mul_f32 v{t}, {f32bits(1.0 / 640)}, v{t}
    v_fma_f32 v{t}, -v{a}, v{a}, v{t}
    v_max_f32 v{t}, 0, v{t}
    v_add_f32 v{t}, {f32bits(1e-5)}, v{t}
    v_rsq_f32 v{b}, v{t}
    v_mul_f32 v{b + 1}, -v{a}, v{b}
    """)
    return b
def ew_norm(k, N, X, st):
    for i in range(10): pk(k, "fma", N + 2 * i, X + 2 * i, st, st, mods="op_sel:[0,0,1] op_sel_hi:[1,0,1]")
def ewfma(k, dst, a, b, c):
    for i in range(10): pk(k, "fma", dst + 2 * i, a + 2 * i, b + 2 * i, c + 2 * i)
def window(k):
    for t in range(5):
        unpack(k, PX + 4 * t, PX + 4 * t + 1, QR + 2 * t); unpack(k, PX + 4 * t + 2, PX + 4 * t + 3, QR + 2 * t + 1)
    st = ln_stats(k, PX, 0)
    for vec in (1, 0, 2, 3, 4):
        for t in range(5):
            k.lds(f"ds_read_b128 {vr(PM + 20 * vec + 4 * t, 4)}, v15 offset:{2560 * vec + 128 * t}", vec)
        if vec == 0: ew_norm(k, PN, PX, st)
        if vec == 2:
            k.wait(lg=[0, 1]); ewfma(k, PN, PN, PM + 20, PM)
    k.wait(lg=[2])
    for i in range(10): pk(k, "mul", PN + 2 * i, PN + 2 * i, PM + 40 + 2 * i)
    k.wait_all(vm=False)
def p2_main(k, after_issue):
    for n in range(3):
        k(f"s_add_u32 m0, {YYL}, {1024 * n}\ns_movk_i32 {t0}, {2048 * n}")
        k.vmem(f"buffer_load_dwordx4 v7, {rWS}, {t0} offen sc1 lds", "yy")
    after_issue()
    stamp(k, 10)
    for t in range(5):
        k.lds(f"ds_read_b64_tr_b16 {vr(PRAW + 2 * t, 2)}, v8 offset:{512 * t}", t)
    for t in range(5):
        k.wait(lg=[t])
        unpack(k, PY + 4 * t, PY + 4 * t + 1, PRAW + 2 * t); unpack(k, PY + 4 * t + 2, PY + 4 * t + 3, PRAW + 2 * t + 1)
    ewfma(k, PX, PN, PY, PX)
    k(f"s_mov_b32 {t1}, {WS_X1:#x}")
    for t in range(5):
        cvt4(k, PRAW + 2 * t, PX + 4 * t)
        k.vmem(f"buffer_store_dwordx2 {vr(PRAW + 2 * t, 2)}, v6, {rWS}, {t1} offen offset:{64 * t}")
    st = ln_stats(k, PX, 256)
    ew_norm(k, PN, PX, st)
    ewfma(k, PN, PN, PM + 80, PM + 60)
    for t in range(5):
        cvt4(k, PY + 2 * t, PN + 4 * t)
        k(f"s_movk_i32 {t0}, {1024 * t}")
        k.vmem(f"buffer_store_dwordx2 {vr(PY + 2 * t, 2)}, v11, {rWS}, {t0} offen")

WDV, FB, AR, ACC = 16, 40, 60, 124
def wd_reg(n):
    return ar(4 * n, 4) if n < 64 else vr(WDV + 4 * (n - 64), 4)
def wd_setup(k):
    k(f"""
    s_lshr_b32 {t0}, {J}, 2
    s_mul_i32 {SB0}, {W}, 14
    s_cmp_eq_u32 {W}, 3
    s_cselect_b32 {SB0}, 41, {SB0}
    s_mul_i32 {t0}, {t0}, 54
    s_add_u32 {t0}, {t0}, {SB0}
    s_mul_i32 {t0}, {t0}, 5120
    s_add_u32 {t0}, {t0}, {WS_WDF:#x}
    v_lshl_add_u32 v14, v1, 4, {t0}
    s_cmp_ge_u32 {W}, 2
    s_cselect_b32 {WDL}, {OOB:#x}, 0
    """)
def wd_load(k, n):
    kbl, ct = n // 5, n % 5
    off = kbl * 5120 + ct * 1024
    if kbl == 13: k(f"s_add_u32 {t0}, {WDL}, {off & ~4095}")
    else: k(f"s_mov_b32 {t0}, {off & ~4095}")
    k.vmem(f"buffer_load_dwordx4 {wd_reg(n)}, v14, {rWS}, {t0} offen offset:{off & 4095}{sc('SCW')}", "wd")
def gemm1(k):
    k(f"""
    v_lshrrev_b32 v2, 2, v1
    v_lshlrev_b32 v2, 7, v2
    v_and_b32 v3, 3, v1
    v_lshl_add_u32 v2, v3, 3, v2
    v_bfe_u32 v3, v1, 3, 2
    v_lshl_add_u32 v6, v3, 5, v2
    v_xor_b32 v4, 1, v3
    v_lshl_add_u32 v7, v4, 5, v2
    v_xor_b32 v4, 2, v3
    v_lshl_add_u32 v8, v4, 5, v2
    v_xor_b32 v4, 3, v3
    v_lshl_add_u32 v9, v4, 5, v2
    s_lshl_b32 {t0}, {G}, 4
    s_lshl_b32 {t1}, {W}, 2
    s_add_u32 {t0}, {t0}, {t1}
    s_mul_i32 {t1}, {t0}, {H2B * 1024}
    s_add_u32 {t1}, {t1}, {WS_H2F:#x}
    v_lshl_add_u32 v10, v1, 4, {t1}
    s_mul_i32 {t0}, {t0}, {HHB}
    s_lshl_b32 {t1}, {LC}, 1
    s_add_u32 {t0}, {t0}, {t1}
    s_lshl_b32 {t0}, {t0}, 10
    s_add_u32 {t0}, {t0}, {WS_HH:#x}
    v_lshl_add_u32 v11, v1, 4, {t0}
    """)
    KORD = list(range(8)) + list(range(10, 20)) + [8, 9]
    def lda1(kb, rt):
        if OPT.get("NOA") and kb >= 4: return
        k(f"s_mov_b32 {t0}, {rt * H2B * 1024 + KORD[kb] * 1024}")
        k.vmem(f"buffer_load_dwordx4 {vr(AR + 16 * (kb & 3) + 4 * rt, 4)}, v10, {rWS}, {t0} offen{sc('SCA')}", ("a", kb))
    for rt in range(4): lda1(0, rt)
    NB, LA = OPT.get("NB", 4), OPT.get("LA", 3)
    frs = [(kb, p, a) for kb in range(20) for p in range(4) for a in range(2)]
    first_late = 10 + OPT.get("NA", 4) + OPT.get("NB_", 2)
    late = list(range(first_late, 20)) + [8, 9]
    LATE0, LSTEP = OPT.get("LATE0", 1), OPT.get("LSTEP", 1)
    bar_kb = min(first_late - 2, 18)
    WD0, WDE = OPT.get("WD0", LATE0 + LSTEP * len(late)), OPT.get("WDE", 0)
    wdq = list(range(OPT.get("WDA", 0) + OPT.get("WDB", 0), 70 - WDE))
    nslots = (20 - WD0) * 4
    slots = set(int(x * nslots / max(len(wdq), 1)) for x in range(len(wdq)))
    def read(i, t):
        if i >= len(frs) or (OPT.get("NOTR") and i >= NB): return
        kb, p, a = frs[i]
        if p == 0 and a == 0 and t == 0:
            if kb == bar_kb:
                k.wait(vm="w1"); k("s_barrier")
            if kb in (8, 14, 18):
                for v in (6, 7, 8, 9): k(f"v_add_u32 v{v}, {0x10000 if kb < 18 else -0x10000 & 0xffffffff:#x}, v{v}")
        k.lds(f"ds_read_b64_tr_b16 {vr(FB + 4 * (i % NB) + 2 * t, 2)}, v{6 + p} offset:{8192 * (KORD[kb] & 7) + 4096 * a + 2048 * t}", ("f", i))
    for i in range(LA):
        read(i, 0); read(i, 1)
    for rt in range(4): lda1(1, rt)
    for i, (kb, p, a) in enumerate(frs):
        f = 2 * p + a
        k.wait(lg=[("f", i)])
        if f == 0: k.wait(vm=[("a", kb)])
        if f == 0 and OPT.get("TSG1") and kb in (0, 1, 2, 4, 6, 8, 10, 12, 16): stamp(k, 1 + (0, 1, 2, 4, 6, 8, 10, 12, 16).index(kb))
        for rt in range(4):
            d = ACC + 4 * (rt * 8 + a * 4 + p)
            k(f"v_mfma_f32_16x16x32_bf16 {vr(d, 4)}, {vr(FB + 4 * (i % NB), 4)}, {vr(AR + 16 * (kb & 3) + 4 * rt, 4)}, {'0' if kb == 0 else vr(d, 4)}")
            if rt == 0: read(i + LA, 0)
            if rt == 2: read(i + LA, 1)
            if rt == 1:
                if kb == 0: lda1(2 + f // 4, f % 4)
                if OPT.get("THH", 1) == 2 and kb == OPT.get("THK", 8) and f == 7:
                    k(f"v_lshrrev_b32 v2, 4, v1\nv_mul_u32_u24 v2, {HHB * 1024}, v2\nv_and_b32 v3, 15, v1\nv_lshl_add_u32 v2, v3, 7, v2\nv_lshlrev_b32 v3, 4, v1\nv_sub_u32 v2, v2, v3\nv_add_u32 v2, v2, v11")
                    k.vmem(f"buffer_load_dword v3, v2, {rWS}, 0 offen sc1")
                if f % 2 == 0 and 1 <= kb <= 16: lda1(kb + 3, f // 2)
                if f == 7 and kb >= LATE0 and (kb - LATE0) % LSTEP == 0 and (kb - LATE0) // LSTEP < len(late) and not OPT.get('NOLATE'): w1_block(k, late[(kb - LATE0) // LSTEP])
                if kb >= WD0 and f % 2 == 1 and wdq and OPT["WDPOS"] == 0 and ((kb - WD0) * 4 + f // 2) in slots: wd_load(k, wdq.pop(0))
    stamp(k, 13)
    for n in wdq:
        wd_load(k, n)
        if n % 32 == 31: k.wait_all(lg=False)
    wd_rest = list(range(70 - WDE, 70))
    for rt in range(4):
        for pp in range(2):
            o = FB + 4 * pp
            for h in range(2):
                p = 2 * pp + h
                g, u = ACC + 4 * (rt * 8 + p), ACC + 4 * (rt * 8 + 4 + p)
                pk(k, "mul", g, g, u); pk(k, "mul", g + 2, g + 2, u + 2)
                cvt4(k, o + 2 * h, g)
            k(f"s_mov_b32 {t0}, {HHB * 1024 * rt}")
            k.vmem(f"buffer_store_dwordx4 {vr(o, 4)}, v11, {rWS}, {t0} offen offset:{1024 * pp}{sc('HHS')}", "hh")
    for n in wd_rest: wd_load(k, n)
A2, HR, RD, X1R, GBR, XF = 40, 80, 136, 196, 206, 226
def gemm2_addr(k):
    k(f"""
    s_lshl_b32 {t0}, {G}, 4
    s_and_b32 {t1}, {J}, 3
    s_lshl_b32 {t1}, {t1}, 2
    s_add_u32 {D0}, {t0}, {t1}
    s_lshl_b32 {t0}, {SB0}, 10
    s_add_u32 {t0}, {t0}, {WS_HH:#x}
    v_lshl_add_u32 v6, v1, 4, {t0}
    v_and_b32 v9, 15, v1
    s_add_u32 {t0}, {D0}, {W}
    s_lshl_b32 {t0}, {t0}, 4
    v_add_u32 v9, {t0}, v9
    v_mul_u32_u24 v9, 1280, v9
    s_lshr_b32 {t0}, {J}, 2
    s_mul_i32 {t1}, {t0}, 160
    v_add_u32 v9, {t1}, v9
    v_lshrrev_b32 v11, 4, v1
    v_lshl_add_u32 v10, v11, 3, v9
    v_lshl_add_u32 v9, v11, 4, v9
    s_lshl_b32 {t1}, {t1}, 1
    s_add_u32 {t1}, {t1}, {WS_MOD + 5 * 2560:#x}
    v_lshl_add_u32 v12, v11, 4, {t1}
    v_lshl_add_u32 v11, v11, 5, {t1}
    v_lshlrev_b32 v13, 4, v1
    s_mul_i32 {t0}, {W}, 15360
    v_add_u32 v15, {t0}, v13
    """)
def gemm2(k):
    order = [1, 2, 3, 0]
    def set_base(i):
        k(f"s_add_u32 {t2}, {W}, {i}\ns_and_b32 {t2}, {t2}, 3\ns_add_u32 {t3}, {t2}, {D0}\ns_mul_i32 {t3}, {t3}, {HHB * 1024}\ns_add_u32 {t4}, {t3}, {WDL}")
    def ldh(si, kbl):
        k(f"s_add_u32 {t0}, {t4 if kbl == 13 else t3}, {(kbl * 1024) & ~4095}")
        k.vmem(f"buffer_load_dwordx4 {vr(HR + 4 * kbl, 4)}, v6, {rWS}, {t0} offen offset:{(kbl * 1024) & 4095}{sc('SCH')}", ("h", si, kbl))
    set_base(order[0])
    for kbl in range(14): ldh(0, kbl)
    k.vm = ["wd"] + k.vm
    if OPT.get("TSG2"): stamp(k, 1)
    for si, i in enumerate(order):
        acc = A2 + 20 * (si & 1)
        if si < 3:
            k(f"s_add_u32 {t1}, {W}, {i}\ns_and_b32 {t1}, {t1}, 3\ns_mul_i32 {t1}, {t1}, 15360\ns_add_u32 {t1}, {t1}, {(i - 1) * 5120}\nv_add_u32 v{7 + (si & 1)}, {t1}, v13")
            set_base(order[si + 1])
        if si == 3:
            srd(k, R_B, P_OUT, SZ_SD)
            k(f"s_mov_b32 {t1}, {WS_X1:#x}")
            k.vmem(f"buffer_load_dwordx4 {vr(X1R, 4)}, v9, {rWS}, {t1} offen sc1", "ep")
            k.vmem(f"buffer_load_dwordx4 {vr(X1R + 4, 4)}, v9, {rWS}, {t1} offen offset:64 sc1", "ep")
            k.vmem(f"buffer_load_dwordx2 {vr(X1R + 8, 2)}, v10, {rWS}, {t1} offen offset:128 sc1", "ep")
            for j in range(4):
                k.vmem(f"buffer_load_dwordx4 {vr(GBR + 4 * j, 4)}, v11, {rWS}, 0 offen offset:{128 * (j >> 1) + 16 * (j & 1)} sc1", "ep")
            k.vmem(f"buffer_load_dwordx4 {vr(GBR + 16, 4)}, v12, {rWS}, 0 offen offset:256 sc1", "ep")
        for kbl in range(14):
            k.wait(vm=[("h", si, kbl)])
            for ct in range(5):
                d = acc + 4 * ct
                k(f"v_mfma_f32_16x16x32_bf16 {vr(d, 4)}, {wd_reg(5 * kbl + ct)}, {vr(HR + 4 * kbl, 4)}, {'0' if kbl == 0 else vr(d, 4)}")
                if si >= 1 and kbl == 2:
                    k.lds(f"ds_write_b128 v{7 + ((si - 1) & 1)}, {vr(A2 + 20 * ((si - 1) & 1) + 4 * ct, 4)} offset:{1024 * ct}")
            if si < 3 and not OPT.get("NOH"): ldh(si + 1, kbl)
        if OPT.get("TSG2"): stamp(k, 2 + si)
    k.wait_all(vm=False)
    k("s_barrier")
    if OPT.get("TSG2"): stamp(k, 6)
    for n in range(15):
        k.lds(f"ds_read_b128 {vr(RD + 4 * n, 4)}, v15 offset:{1024 * n}", n)
    k.wait(vm="ep")
    for i in range(10): unpack(k, XF + 2 * i, XF + 2 * i + 1, X1R + i)
    acc = A2 + 20
    for sl in range(3):
        k.wait(lg=[5 * sl + 4])
        for i in range(10): pk(k, "add", acc + 2 * i, acc + 2 * i, RD + 20 * sl + 2 * i)
    ewfma(k, acc, acc, GBR, XF)
    for i in range(10): k(f"v_cvt_pk_bf16_f32 v{X1R + i}, v{acc + 2 * i}, v{acc + 2 * i + 1}")
    if OPT.get("TSG2"): stamp(k, 7)
    k.vmem(f"buffer_store_dwordx4 {vr(X1R, 4)}, v9, {rB}, 0 offen")
    k.vmem(f"buffer_store_dwordx4 {vr(X1R + 4, 4)}, v9, {rB}, 0 offen offset:64")
    k.vmem(f"buffer_store_dwordx2 {vr(X1R + 8, 2)}, v10, {rB}, 0 offen offset:128")

class Weave:
    def __init__(self, k, items, n):
        self.k, self.items, self.n = k, list(items), n
    def __enter__(self):
        self.cnt = 0; self.busy = False
        def hook(ins):
            if self.busy or not self.items or ins.cls not in ("valu", "ds"): return
            self.cnt += 1
            if self.cnt % self.n == 0:
                self.busy = True; self.items.pop(0)(); self.busy = False
        self.k.hook = hook
        return self
    def __exit__(self, *a):
        self.k.hook = None
        for it in self.items: it()
def fresh(k):
    k.vm = []; k.lg = []
def drain_barrier(k):
    k.wait_all(); k("s_barrier")

def touch(k, v, n, dst):
    lanes(k, n)
    k(f"buffer_load_dword v{dst}, v{v}, {rWS}, 0 offen sc1")
    all_lanes(k)
def mod_dma(k):
    k(f"v_lshlrev_b32 v2, 4, v1\nv_add_u32 v2, {WS_MOD:#x}, v2")
    for n in range(13):
        if n % 4 == 0: k(f"s_mov_b32 m0, {L_MOD + 1024 * n}\ns_movk_i32 {t0}, {1024 * n}")
        k(f"buffer_load_dwordx4 v2, {rWS}, {t0} offen offset:{1024 * (n % 4)} sc1 lds")
SM_TEST = f"v_cmp_ne_u32 vcc, {TAG}, v176"
SM_LOAD = f"buffer_load_dword v176, v175, {rWS}, 0 offen sc1"
def sm_addr(k):
    k(f"s_lshl_b32 {t0}, {G}, 10\ns_add_u32 {t0}, {t0}, {WS_FL + FL_SHR:#x}\nv_lshl_add_u32 v175, v1, 2, {t0}")
def poll_sm(k):
    spin(k, SM_LOAD, SM_TEST, 8)
def poll_sw(k):
    k(f"s_lshl_b32 {t0}, {G}, 7\ns_add_u32 {t0}, {t0}, {WS_FL + FL_SWR:#x}\nv_lshl_add_u32 v2, v1, 2, {t0}")
    spin(k, f"buffer_load_dword v3, v2, {rWS}, 0 offen sc1", f"v_cmp_ne_u32 vcc, {TAG}, v3", 32)
def publish8(k, line):
    k(f"s_lshl_b32 {t0}, {G}, 2\ns_add_u32 {t0}, {t0}, {WS_FL + line:#x}\nv_lshlrev_b32 v2, 10, v1\nv_add_u32 v2, {t0}, v2\nv_mov_b32 v3, {TAG}")
    lanes(k, 8)
    k(f"buffer_store_dword v3, v2, {rWS}, 0 offen sc1")
    all_lanes(k)

def kernel():
    k = K("p")
    k(f"s_cmp_ge_u32 s2, 256\ns_cbranch_scc1 {END}")
    k("s_load_dwordx16 s[36:51], s[0:1], 0\ns_load_dwordx8 s[52:59], s[0:1], 64\ns_load_dwordx4 s[60:63], s[0:1], 96\ns_load_dwordx2 s[64:65], s[0:1], 112")
    stamp(k, 0)
    k(f"s_and_b32 {G}, s2, 7\ns_lshr_b32 {J}, s2, 3\nv_and_b32 v1, 63, v0\nv_lshrrev_b32 v2, 6, v0\ns_mov_b32 {MASK}, 0xffff0000\nv_readfirstlane_b32 {W}, v2")
    p1a_addr(k)
    k(f"v_mov_b32 v3, {WS_FL + FL_E:#x}")
    k("s_waitcnt lgkmcnt(0)")
    stamp(k, 1)
    srd(k, R_WS, P_WS, WS_END); srd(k, R_A, P_K, SZ_SD); srd(k, R_B, P_V, SZ_SD); srd(k, R_C, P_SK, D * 8)
    E_LOAD = f"buffer_load_dword v4, v3, {rWS}, 0 offen sc1"
    def make_tag():
        k(f"s_getreg_b32 {FV}, hwreg(HW_REG_XCC_ID, 0, 4)\ns_mov_b32 {MODE}, 0\nv_readfirstlane_b32 {TAG}, v4")
        k(f"s_mul_i32 {TAG}, {TAG}, 0x9e3779b1\ns_add_u32 {TAG}, {TAG}, 0x7f4a7c15\ns_add_u32 {FV}, {FV}, {TAG}")
    l_common, l_htail = k.label(), k.label()
    l_mod = skip_if(k, J, "ge", 24)
    k(f"s_mov_b64 exec, s[{PMK}:{PMK+1}]")
    p1a_loads(k)
    all_lanes(k)
    l = only_w3(k); k(f"{E_LOAD}\n{l}:")
    l_wd = skip_if(k, J, "ge", 20)
    state = list(k.vm)
    conv_pre(k)
    def wait_kv():
        k.wait(vm="v"); stamp(k, 2)
    p1a_compute(k, wait_kv)
    if OPT.get("TSA") == 1: stamp(k, 8)
    l = only_w3(k)
    k("s_waitcnt vmcnt(5)")
    make_tag()
    k(l + ":")
    conv_kloads(k)
    w1_setup(k)
    k.wait(vm="st")
    k("s_waitcnt lgkmcnt(0)\ns_barrier")
    w3_signal(k, FL_S1)
    stamp(k, 3)
    p2_addr(k)
    k.wait(vm="kr")
    conv_odd(k)
    conv_build(k)
    sm_addr(k)
    if OPT.get("TSA") == 1: stamp(k, 9)
    l = only_w3(k)
    first_poll(k)
    slow_s1(k)
    k(l + ":")
    k("s_barrier")
    stamp(k, 4)
    def sm_early():
        l = only_w3(k); k(SM_LOAD); k(l + ":")
    conv_main(k, sm_early)
    l = only_w3(k)
    ok = k.label()
    lanes(k, 8)
    k(f"s_waitcnt vmcnt(4)\n{SM_TEST}\ns_cbranch_vccz {ok}")
    poll_sm(k)
    k(ok + ":")
    all_lanes(k)
    mod_dma(k)
    l2 = k.label()
    k(f"s_waitcnt vmcnt(13)\ns_branch {l2}\n{l}:\ns_waitcnt vmcnt(0)\n{l2}:\ns_barrier")
    l = only_w3(k)
    signal(k, FL_S2)
    k(f"s_waitcnt vmcnt(0)\n{l}:")
    k(f"s_branch {l_common}")
    def w_touch(first_row, nwaves_shift, lines, n, jbase):
        k(f"s_sub_u32 {t0}, {J}, {jbase}\ns_lshl_b32 {t0}, {t0}, 1\ns_lshr_b32 {t1}, {W}, 1\ns_add_u32 {t0}, {t0}, {t1}\ns_mul_i32 {t0}, {t0}, {lines * 128}\ns_add_u32 {t0}, {t0}, {first_row * 3456}\nv_lshl_add_u32 v2, v1, 7, {t0}")
        for i in range(n):
            k.vmem(f"buffer_load_dword v{16 + i}, v2, {rW}, 0 offen", "t")
            if i + 1 < n: k("v_add_u32 v2, 0x2000, v2")
    k(l_wd + ":")
    k.vm = list(state)
    p1a_compute(k, wait_kv)
    l = only_w3(k)
    k("s_waitcnt vmcnt(4)")
    make_tag()
    k(l + ":")
    w1_setup(k)
    drain_barrier(k)
    w3_signal(k, FL_S1)
    stamp(k, 3)
    k(f"s_lshl_b32 {HI}, {G}, 2\ns_add_u32 {HI}, {HI}, {J}\ns_sub_u32 {HI}, {HI}, 20")
    wd_loads(k)
    p2_addr(k)
    q_loads(k)
    stamp(k, 4)
    l = only_w3(k)
    first_poll(k)
    k(l + ":")
    drain_barrier(k)
    stamp(k, 5)
    wd_job(k)
    drain_barrier(k)
    l = only_w3(k)
    k(f"s_lshl_b32 {t0}, {HI}, 2\ns_add_u32 {t0}, {t0}, {WS_FL + FL_SWR:#x}\nv_lshl_add_u32 v2, v1, 7, {t0}\nv_mov_b32 v3, {TAG}")
    lanes(k, 8)
    k(f"buffer_store_dword v3, v2, {rWS}, 0 offen sc1")
    all_lanes(k)
    k(l + ":")
    p2_addr(k)
    k(f"s_branch {l_htail}")
    k(l_mod + ":")
    k.vm = ["e"]
    l = only_w3(k); k(f"{E_LOAD}\n{l}:")
    srd(k, R_D, P_SSMK, D * S * 2)
    k(f"s_lshl_b32 {HI}, {G}, 3\ns_add_u32 {HI}, {HI}, {J}\ns_sub_u32 {HI}, {HI}, 24")
    k(f"s_mul_i32 {t0}, {G}, {80 * 4096}\ns_sub_u32 {t1}, {J}, 24\ns_mul_i32 {t1}, {t1}, 40960\ns_add_u32 {t0}, {t0}, {t1}\nv_lshl_add_u32 v5, v0, 7, {t0}\nv_add_u32 v6, 32768, v5")
    k(f"s_getpc_b64 s[0:1]\ns_and_b32 s0, s0, 0xffffff00\ns_sub_u32 {t0}, {J}, 24\ns_lshl_b32 {t0}, {t0}, 12\ns_min_u32 {t0}, {t0}, {(OPT['CODEKB'] - 3) * 1024}\ns_add_u32 s0, s0, {t0}\ns_addc_u32 s1, s1, 0")
    k("v_lshlrev_b32 v14, 4, v0\nv_mov_b32 v15, s1\nv_add_co_u32 v14, vcc, s0, v14\nv_addc_co_u32 v15, vcc, 0, v15, vcc")
    k.vmem("global_load_dwordx4 v[16:19], v[14:15], off")
    k.vmem(f"buffer_load_dword v21, v5, {rD}, 0 offen")
    k.vmem(f"buffer_load_dword v20, v5, {rWS}, 0 offen sc1")
    l = skip_if(k, W, "lg", 0)
    k(f"buffer_load_dword v23, v6, {rD}, 0 offen\nbuffer_load_dword v22, v6, {rWS}, 0 offen sc1\n{l}:")
    l = only_w3(k)
    keep = list(k.vm)
    k.wait(vm="e")
    make_tag()
    signal(k, FL_S1)
    k.vm = keep
    k(l + ":")
    w1_setup(k)
    mod_loads(k)
    p2_addr(k)
    srd(k, R_C, P_Q, SZ_SD)
    for t in range(5):
        k.vmem(f"buffer_load_dwordx2 {vr(QR + 2 * t, 2)}, v6, {rC}, 0 offen offset:{64 * t}", "q")
    stamp(k, 4)
    l = skip_if(k, HI, "ge", 60)
    mod_job(k)
    k(l + ":")
    stamp(k, 5)
    l = only_w3(k)
    first_poll(k)
    k(l + ":")
    drain_barrier(k)
    l = only_w3(k)
    signal(k, FL_SH)
    l2 = skip_if(k, J, "lg", 31)
    poll(k, FL_SH + 96, 8)
    publish8(k, FL_SHR)
    k(f"{l2}:\n{l}:")
    p2_addr(k)
    if OPT.get("MT", 0):
        k(f"s_lshl_b32 {t0}, {HI}, 1\ns_lshr_b32 {t1}, {W}, 1\ns_add_u32 {t0}, {t0}, {t1}\ns_mul_i32 {t0}, {t0}, {81 * 128}\ns_add_u32 {t0}, {t0}, {256 * 3456}\nv_lshl_add_u32 v2, v1, 7, {t0}")
        k(f"buffer_load_dword v16, v2, {rW}, 0 offen\nv_add_u32 v2, 0x2000, v2")
        lanes(k, 17)
        k(f"buffer_load_dword v17, v2, {rW}, 0 offen")
        all_lanes(k)
    if OPT.get("WTOUCH", 0):
        w_touch(320, 4, 270, 5, 24)
        if OPT["WTOUCH"] > 1: w_touch(480, 4, 270, 5, 24)
    k(l_htail + ":")
    fresh(k)
    stamp(k, 6)
    k(f"s_cmp_ge_u32 {LC}, 27\ns_cselect_b32 s{R_W + 2}, 0, s{R_W + 2}")
    w1_rot_init(k, 0, 8)
    for kb in range(8): w1_rot(k, 0, 8)
    l = only_w3(k)
    sm_addr(k)
    poll_sm(k)
    mod_dma(k)
    k(l + ":")
    k("s_waitcnt vmcnt(0)")
    k(l_common + ":")
    fresh(k)
    stamp(k, 7)
    if OPT.get("TH2", 1):
        l = skip_if(k, W, "lg", 0)
        k(f"""
        s_lshl_b32 {t0}, {G}, 5
        s_add_u32 {t0}, {t0}, {J}
        s_lshr_b32 {t1}, {t0}, 1
        s_mul_i32 {t1}, {t1}, {H2B * 1024}
        s_and_b32 {t0}, {t0}, 1
        s_lshl_b32 {t0}, {t0}, 7
        s_add_u32 {t0}, {t0}, {t1}
        s_add_u32 {t0}, {t0}, {WS_H2F:#x}
        v_lshl_add_u32 v2, v1, 8, {t0}
        v_add_u32 v3, 16384, v2
        """)
        touch(k, 2, 64, 250); touch(k, 3, 16, 251)
        k(l + ":")
    wd_setup(k)
    NA, NB_ = OPT.get("NA", 4), OPT.get("NB_", 2)
    if NA: w1_rot_init(k, 10, NA)
    with Weave(k, [lambda: w1_rot(k, 10, NA)] * NA, OPT.get("WEAVE", 16)):
        window(k)
    if not OPT.get("TSA"): stamp(k, 8)
    l = only_w3(k)
    l2 = skip_if(k, J, "lg", 31)
    poll(k, FL_S2, 20)
    publish8(k, FL_REP)
    k(l2 + ":")
    poll(k, FL_REP, 8, TAG)
    l3 = skip_if(k, "s2", "lg", 0)
    k(f"v_mov_b32 v2, {WS_FL + FL_E:#x}\nv_mov_b32 v3, {TAG}")
    lanes(k, 1)
    k(f"buffer_store_dword v3, v2, {rWS}, 0 offen sc1")
    all_lanes(k)
    k(f"{l3}:\n{l}:\ns_barrier")
    if not OPT.get("TSA"): stamp(k, 9)
    WDA, WDB = OPT.get("WDA", 0), OPT.get("WDB", 0)
    def w3_share():
        if NB_: w1_rot_init(k, 10 + NA, NB_)
        for n in range(NB_): w1_rot(k, 10 + NA, NB_)
        for n in range(WDA): wd_load(k, n)
        k.wait(vm="yy")
    p2_main(k, w3_share)
    drain_barrier(k)
    w3_signal(k, FL_S3)
    stamp(k, 11)
    l_g2 = k.label()
    l_nog1 = skip_if(k, LC, "ge", 27)
    l = skip_if(k, W, "eq", 3)
    for n in range(WDA, WDA + WDB): wd_load(k, n)
    k(l + ":")
    l = only_w3(k); poll_sw(k); poll(k, FL_S3, 32); k(l + ":")
    l = only_w3(k)
    for n in range(WDA, WDA + WDB): wd_load(k, n)
    k(l + ":")
    k("s_barrier")
    stamp(k, 12)
    gemm1(k)
    k.wait(vm="hh")
    k("s_barrier")
    w3_signal(k, FL_S4)
    k(f"s_branch {l_g2}\n{l_nog1}:")
    fresh(k)
    l = only_w3(k); poll_sw(k)
    if OPT.get("SPAREWAIT"): poll(k, FL_S4, 27)
    k(l + ":")
    k("s_barrier")
    if OPT.get("THH", 1) == 1:
        k(f"""
        s_mul_i32 {t0}, {G}, {16 * HHB * 1024}
        s_sub_u32 {t1}, {LC}, 27
        s_mul_i32 {t1}, {t1}, {6 * 32768}
        s_add_u32 {t0}, {t0}, {t1}
        s_add_u32 {t0}, {t0}, {WS_HH:#x}
        v_lshl_add_u32 v2, v0, 7, {t0}
        """)
        for n in range(6):
            k(f"buffer_load_dword v{40 + n}, v2, {rWS}, 0 offen sc1\nv_add_u32 v2, 0x8000, v2")
    for n in range(WDA, 70):
        wd_load(k, n)
        if n % 32 == 31: k.wait_all(lg=False)
    k.wait_all()
    k(l_g2 + ":")
    fresh(k)
    gemm2_addr(k)
    w3_poll(k, FL_S4, 27)
    k("s_barrier")
    stamp(k, 14)
    gemm2(k)
    if OPT["TS"]:
        k.wait_all()
        stamp(k, 15)
        k(f"s_waitcnt lgkmcnt(0)\ns_lshl_b32 {t0}, s2, 2\ns_add_u32 {t0}, {t0}, {W}\ns_lshl_b32 {t0}, {t0}, 7\ns_add_u32 {t0}, {t0}, {WS_TS:#x}\nv_mov_b32 v2, {t0}")
        for i in range(16):
            k(f"v_mov_b32 v3, s{70 + 2 * i}\nbuffer_store_dword v3, v2, {rWS}, 0 offen offset:{4 * i}")
    k(f"{END}:\ns_endpgm")
    return k

if __name__ == "__main__":
    k = kernel()
    src = open("adaLN_cond__ssm_conv_h3__glu_gated_bilinear__prompt.s.ref").read()
    head = "".join(l + "\n" for l in src.split("\n") if l.startswith(";") and "@launch" not in l)
    if OPT.get("LIST"):
        txt = build([(NAME, 256, 256, 163840)], [(NAME, k.text(), 512, 256, 102)], head)
    else:
        txt = build([], [(NAME, k.text(), 512, 256, 102)], head + "; @launch grid=(256,1,1) block=(256,1,1) lds=163840\n")
    open(OPT["out"], "w").write(txt)
    print("wrote", OPT["out"], "nops", k.nops)
```
